```python
import torch

def _softmax(x, axis=-1):
    return torch.softmax(x, dim=axis)
def _gelu(x):
    return torch.nn.functional.gelu(x, approximate="tanh")
def _silu(x):
    return torch.nn.functional.silu(x)
def _sigmoid(x):
    return torch.sigmoid(x)
def _layernorm(x, axis=-1, eps=1e-5):
    m = x.mean(dim=axis, keepdim=True)
    v = x.var(dim=axis, keepdim=True, unbiased=False)
    return (x - m) / torch.sqrt(v + eps)
def _scatter_add(tgt, idx, src, axis=0):
    return tgt.clone().index_add_(axis, idx, src)
def _segment_sum(src, seg, n):
    out = torch.zeros((n,) + src.shape[1:], dtype=src.dtype)
    return out.index_add_(0, seg, src)
def _pad(x, pw):
    flat = tuple(v for pair in reversed(pw) for v in pair)
    return torch.nn.functional.pad(x, flat)

kernel_name = 'standalone__weight_only_int_quip__prompt'

def setup_inputs():

    _w = (lambda a: (lambda t: t.to(torch.bfloat16) if t.is_floating_point() else t)(torch.as_tensor(a)))
    B, S, D, F = 1, 2048, 1024, 3584
    G = 128 if 128 > 0 else D
    D = (D // G) * G
    ng = D // G
    bits = 3 if 3 > 0 else 4
    qmax = 1 << bits
    qw = torch.randint(0, qmax, (D, F)).to(torch.int32)
    U, _ = (lambda *_a, **_k: torch.linalg.qr(*[torch.as_tensor(_x).float() for _x in _a], **_k))((lambda *s: torch.randn(*s, dtype=torch.bfloat16) * 0.05)(D, D))
    V, _ = (lambda *_a, **_k: torch.linalg.qr(*[torch.as_tensor(_x).float() for _x in _a], **_k))((lambda *s: torch.randn(*s, dtype=torch.bfloat16) * 0.05)(F, F))
    return {
        "x": _w((lambda *s: torch.randn(*s, dtype=torch.bfloat16) * 0.05)(B, S, D)),
        "qw": _w(qw),
        "scales": _w(torch.abs((lambda *s: torch.randn(*s, dtype=torch.bfloat16) * 0.05)(ng, F)) * 0.02 + 0.005),
        "zeros": _w(torch.full((ng, F), qmax / 2.0, dtype=float)),
        "U": _w(U.to(float)),
        "V": _w(V.to(float)),
    }

def reference(x, qw, scales, zeros, U, V):
    B, S, D = x.shape
    ng, F = scales.shape
    G = D // ng
    s = (lambda x, n, axis: torch.repeat_interleave(x, n, dim=axis))(scales, G, axis=0)
    z = (lambda x, n, axis: torch.repeat_interleave(x, n, dim=axis))(zeros, G, axis=0)
    wq = ((lambda x, dt: x.to(dt))(qw, x.dtype) - z) * s
    xr = torch.einsum("bsd,de->bse", x, U)
    h  = torch.einsum("bse,ef->bsf", xr, wq)
    y  = torch.einsum("bsf,fg->bsg", h, V)
    return y
```

```python
class Asm:
    def __init__(self):
        self.lines = []
        self.launch = []
        self.kds = []
    def __call__(self, s=""):
        for l in s.split("\n"):
            self.lines.append("    " + l.strip() if l.strip() and not l.strip().endswith(":") else l.strip())
    def label(self, n): self.lines.append(n + ":")
    def kernel(self, name, grid, block, lds, vgpr, agpr=0, sgpr=96, add_launch=True):
        if add_launch:
            self.launch.append(f"; @launch kernel={name} grid=({grid},1,1) block=({block},1,1) lds={lds}")
        self.lines.append(f".globl {name}")
        self.lines.append(".p2align 8")
        self.lines.append(f".type {name},@function")
        self.lines.append(f"{name}:")
        acc = (vgpr + 3) // 4 * 4
        self.kds.append(f""".p2align 6
.amdhsa_kernel {name}
  .amdhsa_next_free_vgpr {acc + agpr}
  .amdhsa_next_free_sgpr {sgpr}
  .amdhsa_accum_offset {acc}
  .amdhsa_group_segment_fixed_size 0
  .amdhsa_kernarg_size 72
  .amdhsa_user_sgpr_count 2
  .amdhsa_user_sgpr_kernarg_segment_ptr 1
  .amdhsa_system_sgpr_workgroup_id_x 1
  .amdhsa_float_denorm_mode_32 3
  .amdhsa_float_denorm_mode_16_64 3
.end_amdhsa_kernel""")
    def text(self, header=""):
        return (header + "\n".join(self.launch) + "\n" + '.amdgcn_target "amdgcn-amd-amdhsa--gfx950"\n.text\n' + "\n".join(self.lines) +
                '\n.section .rodata,"a"\n' + "\n".join(self.kds) + "\n")
```

```python
import sys
from asmlib import Asm

D, F, S = 1024, 3584, 2048
WQ_OFF, XR_OFF, W2_OFF = 0, 0x800000, 0xC00000
WS_SIZE = 0x10000000

HEADER = open('standalone__weight_only_int_quip__prompt.s.ref').read().split("; Override")[0]

def srd(a, d, lo, size):
    a(f"""s_mov_b32 s{d}, s{lo}
    s_mov_b32 s{d+1}, s{lo+1}
    s_mov_b32 s{d+2}, {size}
    s_mov_b32 s{d+3}, 0x20000""")

def prepass(a):
    NWG = 8*56
    a.kernel("prep_kernel", NWG, 256, 0, 96)
    a(f"""
    s_cmp_ge_u32 s2, {NWG}
    s_cbranch_scc1 L_prep_end
    s_load_dwordx2 s[4:5], s[0:1], 8
    s_load_dwordx2 s[6:7], s[0:1], 16
    s_load_dwordx2 s[8:9], s[0:1], 24
    s_load_dwordx2 s[10:11], s[0:1], 64
    s_and_b32 s30, s2, 7          ; tm
    s_lshr_b32 s31, s2, 3         ; kstep
    v_lshrrev_b32 v1, 3, v0
    v_and_b32 v2, 7, v0           ; octet
    s_mov_b32 s32, {F*4}
    v_mul_lo_u32 v3, v1, s32
    v_lshl_add_u32 v3, v2, 5, v3
    v_lshlrev_b32 v4, 4, v2
    s_mul_i32 s33, s30, {128*F*4}
    s_lshl_b32 s34, s31, 8
    s_add_u32 s33, s33, s34
    s_mul_i32 s35, s30, {F*2}
    s_lshl_b32 s34, s31, 7
    s_add_u32 s35, s35, s34
    s_waitcnt lgkmcnt(0)
    """)
    srd(a, 12, 4, D*F*4); srd(a, 16, 6, 8*F*2); srd(a, 20, 8, 8*F*2); srd(a, 24, 10, WS_SIZE)
    a("""buffer_load_dwordx4 v[8:11], v4, s[16:19], s35 offen
    buffer_load_dwordx4 v[12:15], v4, s[20:23], s35 offen""")
    for it in range(4):
        a(f"buffer_load_dwordx4 v[{32+8*it}:{35+8*it}], v3, s[12:15], s33 offen nt")
        a(f"buffer_load_dwordx4 v[{36+8*it}:{39+8*it}], v3, s[12:15], s33 offen offset:16 nt")
        if it < 3: a(f"s_add_u32 s33, s33, {32*F*4}")
    a(f"""
    v_lshrrev_b32 v5, 4, v1
    v_lshlrev_b32 v5, 10, v5        ; (v1>>4)*1024
    v_and_b32 v6, 15, v1
    v_lshl_add_u32 v5, v6, 4, v5    ; + row*16
    v_and_b32 v6, 3, v2
    v_lshl_add_u32 v5, v6, 8, v5    ; + q*256
    v_lshrrev_b32 v6, 2, v2
    v_lshl_add_u32 v5, v6, 13, v5   ; + ksub*8192
    s_mul_i32 s36, s30, 56
    s_add_u32 s36, s36, s31
    s_lshl_b32 s36, s36, 14
    s_add_u32 s36, s36, {WQ_OFF}
    s_waitcnt vmcnt(8)
    """)
    for j in range(4):
        a(f"v_lshlrev_b32 v{16+2*j}, 16, v{8+j}")
        a(f"v_and_b32 v{17+2*j}, 0xffff0000, v{8+j}")
        a(f"v_lshlrev_b32 v{24+2*j}, 16, v{12+j}")
        a(f"v_and_b32 v{25+2*j}, 0xffff0000, v{12+j}")
    for it in range(4):
        a(f"s_waitcnt vmcnt({6-2*it+it})")
        b = 32+8*it
        for j in range(8): a(f"v_cvt_f32_i32 v{b+j}, v{b+j}")
        for j in range(4):
            a(f"v_cvt_pk_bf16_f32 v{64+j}, v{b+2*j}, v{b+2*j+1}")
        for j in range(4):
            a(f"v_lshlrev_b32 v{b+2*j}, 16, v{64+j}")
            a(f"v_and_b32 v{b+2*j+1}, 0xffff0000, v{64+j}")
        for j in range(8): a(f"v_sub_f32 v{b+j}, v{b+j}, v{24+j}")
        for j in range(4):
            a(f"v_cvt_pk_bf16_f32 v{64+j}, v{b+2*j}, v{b+2*j+1}")
        for j in range(4):
            a(f"v_lshlrev_b32 v{b+2*j}, 16, v{64+j}")
            a(f"v_and_b32 v{b+2*j+1}, 0xffff0000, v{64+j}")
        for j in range(8): a(f"v_mul_f32 v{b+j}, v{b+j}, v{16+j}")
        for j in range(4):
            a(f"v_cvt_pk_bf16_f32 v{68+4*it+j}, v{b+2*j}, v{b+2*j+1}")
        a(f"buffer_store_dwordx4 v[{68+4*it}:{71+4*it}], v5, s[24:27], s36 offen offset:{(it&1)*2048}")
        if it == 1: a("s_add_u32 s36, s36, 4096")
    a.label("L_prep_end")
    a("s_endpgm")

class Op:
    def __init__(s, kind, BX, WX, argoff, size, pitch=0, wsoff=0):
        s.kind, s.BX, s.WX, s.argoff, s.size, s.pitch, s.wsoff = kind, BX, WX, argoff, size, pitch, wsoff
        s.bytes = BX*128
        s.ndma = BX//32
        s.nrd = WX*(2 if kind == 'T' else 1)

def gemm(a, name, nwg, A, B, GA, GB, KSTEPS, NS, mapcode, W, epi):
    STG = A.bytes + B.bytes
    WA, WB = A.WX, B.WX
    vr = [16]
    def valloc(n, al=1):
        while vr[0] % al: vr[0] += 1
        r = vr[0]; vr[0] += n; return r
    for o in (A, B):
        o.vdma = valloc(1 if o.kind == 'F' else o.ndma)
        o.nadr = {'F': 1, 'T': o.WX, 'R': 2}[o.kind]
        o.vbase = valloc(o.nadr); o.vrd = valloc(o.nadr)
    fr = [[valloc(4*WA, 4), valloc(4*WB, 4)] for _ in range(2)]
    acc = valloc(4*WA*WB, 4)
    nv = vr[0]
    a.kernel(name, nwg, 256, NS*STG, nv)
    L = name
    a(f"""
    s_cmp_ge_u32 s2, {nwg}
    s_cbranch_scc1 L_{L}_end
    s_load_dwordx2 s[4:5], s[0:1], {A.argoff}
    s_load_dwordx2 s[6:7], s[0:1], {B.argoff}
    s_load_dwordx2 s[8:9], s[0:1], {48 if epi == 'out' else 64}
    v_lshrrev_b32 v1, 6, v0
    v_and_b32 v2, 63, v0        ; lane
    s_nop 0
    v_readfirstlane_b32 s43, v1  ; wave
    """)
    a(mapcode)
    a(f"""
    s_and_b32 s44, s43, {GA-1}
    s_lshr_b32 s45, s43, {GA.bit_length()-1}
    v_and_b32 v3, 15, v2        ; l&15
    v_lshrrev_b32 v4, 4, v2     ; q
    s_waitcnt lgkmcnt(0)
    """)
    srd(a, 12, 4, A.size); srd(a, 16, 6, B.size); srd(a, 20, 8, S*F*2 if epi == 'out' else WS_SIZE)
    A.srd, B.srd = 12, 16
    A.sg, B.sg = 44, 45
    A.st, B.st = 40, 41
    A.sb, B.sb = 46, 47
    A.so, B.so = 48, 49
    A.sm, B.sm = 50, 51
    A.off, B.off = 0, A.bytes
    for o in (A, B):
        if o.kind == 'F':
            o.kstride = o.bytes
            a(f"""
            s_mul_i32 s52, s43, {o.ndma*1024}
            v_lshl_add_u32 v{o.vdma}, v2, 4, s52
            s_mul_i32 s{o.sb}, s{o.st}, {KSTEPS*o.bytes}
            s_add_u32 s{o.sb}, s{o.sb}, {o.wsoff}
            s_add_u32 s{o.sm}, s52, {o.off}
            s_mul_i32 s52, s{o.sg}, {o.WX*1024}
            s_add_u32 s52, s52, {o.off}
            v_lshl_add_u32 v{o.vbase}, v2, 4, s52
            """)
        elif o.kind == 'T':
            assert o.BX == 128
            o.kstride = 64*o.pitch
            a(f"""
            s_lshl_b32 s52, s43, 4
            v_add_u32 v5, s52, v4
            s_mov_b32 s53, {o.pitch}
            v_mul_lo_u32 v5, v5, s53
            v_lshlrev_b32 v6, 1, v4
            v_xor_b32 v6, v6, v3
            v_lshl_add_u32 v7, v6, 4, v5
            v_xor_b32 v6, 8, v6
            v_lshl_add_u32 v8, v6, 4, v5
            """)
            for ii in range(4):
                a(f"v_add_u32 v{o.vdma+ii}, {ii*(4*o.pitch-1024)}, v{7 if ii < 2 else 8}")
            a(f"""
            s_lshl_b32 s{o.sb}, s{o.st}, 8
            s_lshl_b32 s{o.sm}, s43, 12
            s_add_u32 s{o.sm}, s{o.sm}, {o.off}
            v_lshrrev_b32 v5, 2, v3
            v_lshl_add_u32 v6, v4, 3, v5       ; k_l
            v_lshlrev_b32 v6, 8, v6            ; *256
            v_and_b32 v7, 3, v2
            v_lshl_add_u32 v6, v7, 3, v6       ; + cc*8
            v_add_u32 v6, {o.off}, v6
            v_and_b32 v7, 1, v4
            v_lshl_or_b32 v5, v7, 2, v5        ; g
            s_mul_i32 s52, s{o.sg}, {o.WX}
            """)
            for b in range(o.WX):
                a(f"""s_add_u32 s53, s52, {b}
                v_xor_b32 v7, s53, v5
                v_lshl_add_u32 v{o.vbase+b}, v7, 5, v6""")
        else:
            o.kstride = 128
            assert o.ndma == 4
            a(f"""
            v_lshrrev_b32 v5, 3, v2            ; r
            v_and_b32 v6, 7, v2                ; p
            v_lshrrev_b32 v7, 1, v5
            v_xor_b32 v6, v6, v7
            s_mul_i32 s52, s43, {o.BX//4}
            v_add_u32 v5, s52, v5
            s_mov_b32 s53, {o.pitch}
            v_mul_lo_u32 v5, v5, s53
            v_lshl_add_u32 v7, v6, 4, v5
            v_xor_b32 v6, 4, v6
            v_lshl_add_u32 v8, v6, 4, v5
            """)
            for ii in range(4):
                a(f"v_add_u32 v{o.vdma+ii}, {ii*(8*o.pitch-1024)}, v{7 if ii % 2 == 0 else 8}")
            a(f"""
            s_mul_i32 s{o.sb}, s{o.st}, {o.BX*o.pitch}
            s_mul_i32 s{o.sm}, s43, {o.ndma*1024}
            s_add_u32 s{o.sm}, s{o.sm}, {o.off}
            s_mul_i32 s52, s{o.sg}, {o.WX*2048}
            s_add_u32 s52, s52, {o.off}
            v_lshl_add_u32 v5, v3, 7, s52
            v_lshrrev_b32 v6, 1, v3
            v_xor_b32 v6, v6, v4
            v_lshl_add_u32 v{o.vbase}, v6, 4, v5
            v_xor_b32 v6, 4, v6
            v_lshl_add_u32 v{o.vbase+1}, v6, 4, v5
            """)
    def dma_setup():
        return [f"s_add_u32 s52, s54, s42", f"s_and_b32 s52, s52, {W-1}", f"s_andn2_b32 s53, s54, {W-1}", f"s_or_b32 s52, s52, s53",
                f"s_mul_i32 s{A.so}, s52, {A.kstride}", f"s_add_u32 s{A.so}, s{A.so}, s{A.sb}",
                f"s_mul_i32 s{B.so}, s52, {B.kstride}", f"s_add_u32 s{B.so}, s{B.so}, s{B.sb}",
                f"s_cmp_lt_u32 s54, {KSTEPS}", f"s_cselect_b32 s14, s14, 0", f"s_cselect_b32 s18, s18, 0",
                f"s_cselect_b32 s{A.so}, s{A.so}, 0", f"s_cselect_b32 s{B.so}, s{B.so}, 0"]
    def dma_instrs():
        g = []
        for o in (A, B):
            for ii in range(o.ndma):
                pre = []
                if ii == 0: pre = [f"s_add_u32 m0, s{o.sm}, s55", "s_nop 0"]
                elif ii % 4 == 0: pre = [f"s_add_u32 m0, m0, 4096", f"s_add_u32 s{o.so}, s{o.so}, 4096"]
                v = o.vdma if o.kind == 'F' else o.vdma+ii
                g.append(pre + [f"buffer_load_dwordx4 v{v}, s[{o.srd}:{o.srd+3}], s{o.so} offen offset:{(ii%4)*1024} lds"])
        return g
    def dma_adv():
        return [f"s_add_u32 s54, s54, 1", f"s_add_u32 s55, s55, {STG}", f"s_cmp_eq_u32 s55, {NS*STG}", f"s_cselect_b32 s55, 0, s55"]
    def reads(setn, ksub):
        r = []
        for oi, o in enumerate((A, B)):
            f = fr[setn][oi]
            for x in range(o.WX):
                if o.kind == 'F': r.append(f"ds_read_b128 v[{f+4*x}:{f+4*x+3}], v{o.vrd} offset:{(ksub*(o.BX//16)+x)*1024}")
                elif o.kind == 'R': r.append(f"ds_read_b128 v[{f+4*x}:{f+4*x+3}], v{o.vrd+ksub} offset:{x*2048}")
                else:
                    for t in range(2):
                        r.append(f"ds_read_b64_tr_b16 v[{f+4*x+2*t}:{f+4*x+2*t+1}], v{o.vrd+x} offset:{ksub*8192+t*1024}")
        return r
    def mfmas(setn):
        m = []
        for x in range(WA):
            for y in range(WB):
                c = acc + 4*(x*WB+y)
                m.append(f"v_mfma_f32_16x16x32_bf16 v[{c}:{c+3}], v[{fr[setn][0]+4*x}:{fr[setn][0]+4*x+3}], v[{fr[setn][1]+4*y}:{fr[setn][1]+4*y+3}], v[{c}:{c+3}]")
        return m
    def upd_rd():
        r = []
        for o in (A, B):
            for i in range(o.nadr): r.append(f"v_add_u32 v{o.vrd+i}, s56, v{o.vbase+i}")
        return r
    def interleave(ms, fill):
        n = len(ms); k = len(fill); out = []; j = 0
        for i, m in enumerate(ms):
            out.append(m)
            tgt = (k*(i+1) + n-1)//n if k > n else min(k, i+1)
            while j < tgt:
                out += fill[j]; j += 1
        while j < k: out += fill[j]; j += 1
        return out
    per = A.ndma + B.ndma
    a("s_mov_b32 s54, 0\ns_mov_b32 s55, 0\ns_mov_b32 s56, 0\ns_mov_b32 s57, 0")
    for st in range(NS):
        for i in dma_setup(): a(i)
        for g in dma_instrs():
            for i in g: a(i)
        for i in dma_adv(): a(i)
    for i in range(4*WA*WB): a(f"v_mov_b32 v{acc+i}, 0")
    for i in upd_rd(): a(i)
    a(f"s_waitcnt vmcnt({(NS-1)*per})\ns_barrier")
    for i in reads(0, 0): a(i)
    a.label(f"L_{L}_loop")
    a("s_waitcnt lgkmcnt(0)")
    adv_rd = [f"s_add_u32 s56, s56, {STG}", f"s_cmp_eq_u32 s56, {NS*STG}", f"s_cselect_b32 s56, 0, s56"]
    fill = [[r] for r in reads(1, 1)] + [adv_rd] + [[u] for u in upd_rd()] + [dma_setup()[:4], dma_setup()[4:8], dma_setup()[8:]]
    for i in interleave(mfmas(0), fill): a(i)
    a(f"s_waitcnt vmcnt({(NS-2)*per}) lgkmcnt(0)\ns_barrier")
    fill = [[r] for r in reads(0, 0)] + dma_instrs() + [dma_adv()]
    for i in interleave(mfmas(1), fill): a(i)
    a(f"""s_add_u32 s57, s57, 1
    s_cmp_lt_u32 s57, {KSTEPS}
    s_cbranch_scc1 L_{L}_loop
    s_waitcnt vmcnt(0) lgkmcnt(0)
    s_nop 15
    """)
    t = fr[0][0]
    def C(x, y, i): return acc + 4*(x*WB+y) + i
    if epi == 'xr':
        a(f"""
        v_lshlrev_b32 v5, 4, v2
        s_lshl_b32 s52, s41, 5
        s_lshl_b32 s53, s40, 2
        s_add_u32 s52, s52, s53
        s_lshl_b32 s53, s44, 1
        s_add_u32 s52, s52, s53
        s_lshl_b32 s52, s52, 3
        s_lshl_b32 s53, s45, 2
        s_add_u32 s52, s52, s53
        s_lshl_b32 s52, s52, 10
        s_add_u32 s52, s52, {XR_OFF}
        """)
        n = 0
        for p in range(WA//2):
            for y in range(WB):
                r = t + 4*(n % 8); n += 1
                a(f"""v_cvt_pk_bf16_f32 v{r}, v{C(2*p,y,0)}, v{C(2*p,y,1)}
                v_cvt_pk_bf16_f32 v{r+1}, v{C(2*p,y,2)}, v{C(2*p,y,3)}
                v_cvt_pk_bf16_f32 v{r+2}, v{C(2*p+1,y,0)}, v{C(2*p+1,y,1)}
                v_cvt_pk_bf16_f32 v{r+3}, v{C(2*p+1,y,2)}, v{C(2*p+1,y,3)}
                buffer_store_dwordx4 v[{r}:{r+3}], v5, s[20:23], s52 offen offset:{y*1024}""")
            a("s_add_u32 s52, s52, 8192")
    elif epi == 'w2':
        a(f"""
        s_lshl_b32 s52, s41, 7
        s_lshl_b32 s53, s45, 6
        s_add_u32 s52, s52, s53
        v_add_u32 v5, s52, v3              ; n for y=0
        s_lshl_b32 s52, s40, 2
        s_lshl_b32 s53, s44, 1
        s_add_u32 s52, s52, s53            ; kk0
        s_mul_i32 s52, s52, {14*1024}
        s_add_u32 s52, s52, {W2_OFF}
        s_add_u32 s53, s52, {14*1024}
        s_mov_b32 s58, 9363                ; n*9363>>20 = n/112 for n<3584
        """)
        n = 0
        for y in range(WB):
            a(f"""
            v_add_u32 v6, {16*y}, v5
            v_mul_u32_u24 v7, s58, v6
            v_lshrrev_b32 v7, 20, v7          ; G
            v_mul_u32_u24 v8, 112, v7
            v_sub_u32 v6, v6, v8              ; n'
            v_lshrrev_b32 v8, 1, v7           ; T
            v_mul_u32_u24 v8, {32*14}, v8
            v_and_b32 v7, 1, v7
            v_mad_u32_u24 v8, v7, 7, v8       ; T*448 + (G&1)*7
            v_lshrrev_b32 v7, 5, v6
            v_lshlrev_b32 v7, 1, v7
            v_bfe_u32 v9, v6, 2, 1
            v_add_u32 v7, v7, v9              ; blk
            v_bfe_u32 v9, v6, 3, 2
            v_and_b32 v10, 3, v6
            v_lshl_add_u32 v9, v9, 2, v10     ; row
            v_subrev_u32 v10, 96, v6
            v_cmp_gt_u32 vcc, 96, v6
            s_nop 1
            v_cndmask_b32 v7, 6, v7, vcc
            v_cndmask_b32 v9, v10, v9, vcc
            v_add_u32 v8, v8, v7
            v_lshlrev_b32 v8, 10, v8
            v_lshl_add_u32 v9, v4, 4, v9
            v_lshl_add_u32 v8, v9, 4, v8
            """)
            for p in range(WA//2):
                r = t + 4*(n % 8); n += 1
                a(f"""v_cvt_pk_bf16_f32 v{r}, v{C(2*p,y,0)}, v{C(2*p,y,1)}
                v_cvt_pk_bf16_f32 v{r+1}, v{C(2*p,y,2)}, v{C(2*p,y,3)}
                v_cvt_pk_bf16_f32 v{r+2}, v{C(2*p+1,y,0)}, v{C(2*p+1,y,1)}
                v_cvt_pk_bf16_f32 v{r+3}, v{C(2*p+1,y,2)}, v{C(2*p+1,y,3)}
                buffer_store_dwordx4 v[{r}:{r+3}], v8, s[20:23], s{52+p} offen""")
    else:
        assert WA == 7
        a(f"""
        v_mul_u32_u24 v5, {F*2}, v3
        v_lshl_add_u32 v6, v4, 3, v5
        v_lshl_add_u32 v5, v4, 4, v5
        s_mul_i32 s52, s41, {B.BX}
        s_mul_i32 s53, s45, {WB*16}
        s_add_u32 s52, s52, s53
        s_mul_i32 s52, s52, {F*2}
        s_mul_i32 s53, s40, {A.BX*2}
        s_add_u32 s52, s52, s53
        s_mul_i32 s53, s44, {WA*32}
        s_add_u32 s52, s52, s53
        """)
        n = 0
        for y in range(WB):
            for p in range(3):
                r = t + 4*(n % 8); n += 1
                a(f"""v_cvt_pk_bf16_f32 v{r}, v{C(2*p,y,0)}, v{C(2*p,y,1)}
                v_cvt_pk_bf16_f32 v{r+1}, v{C(2*p,y,2)}, v{C(2*p,y,3)}
                v_cvt_pk_bf16_f32 v{r+2}, v{C(2*p+1,y,0)}, v{C(2*p+1,y,1)}
                v_cvt_pk_bf16_f32 v{r+3}, v{C(2*p+1,y,2)}, v{C(2*p+1,y,3)}
                buffer_store_dwordx4 v[{r}:{r+3}], v5, s[20:23], s52 offen offset:{64*p}""")
            r = t + 4*(n % 8); n += 1
            a(f"""v_cvt_pk_bf16_f32 v{r}, v{C(6,y,0)}, v{C(6,y,1)}
            v_cvt_pk_bf16_f32 v{r+1}, v{C(6,y,2)}, v{C(6,y,3)}
            buffer_store_dwordx2 v[{r}:{r+1}], v6, s[20:23], s52 offen offset:192""")
            a(f"s_add_u32 s52, s52, {16*F*2}")
    a.label(f"L_{L}_end")
    a("s_endpgm")

def build():
    a = Asm()
    prepass(a)
    gemm(a, "a1_kernel", 128, Op('T', 128, 4, 32, D*D*2, pitch=D*2), Op('R', 128, 4, 0, S*D*2, pitch=D*2), 2, 2, 16, 4,
         """s_and_b32 s52, s2, 7
         s_lshr_b32 s53, s2, 3
         s_and_b32 s40, s53, 7
         s_lshr_b32 s53, s53, 3
         s_lshl_b32 s41, s52, 1
         s_add_u32 s41, s41, s53
         s_lshl_b32 s42, s40, 1
         s_lshl_b32 s53, s53, 3
         s_add_u32 s42, s42, s53""", 16, 'xr')
    gemm(a, "a2_kernel", 224, Op('F', 128, 4, 64, WS_SIZE, wsoff=WQ_OFF), Op('T', 128, 4, 40, F*F*2, pitch=F*2), 2, 2, 56, 4,
         """s_and_b32 s52, s2, 7
         s_lshr_b32 s53, s2, 3
         s_mul_i32 s52, s52, 28
         s_add_u32 s52, s52, s53
         s_and_b32 s40, s52, 7
         s_lshr_b32 s41, s52, 3
         s_lshl_b32 s42, s41, 1
         s_add_u32 s42, s42, s40""", 8, 'w2')
    gemm(a, "b_kernel", 256, Op('F', 224, 7, 64, WS_SIZE, wsoff=W2_OFF), Op('F', 128, 4, 64, WS_SIZE, wsoff=XR_OFF), 2, 2, 16, 3,
         """s_and_b32 s52, s2, 7
         s_lshr_b32 s53, s2, 3
         s_and_b32 s40, s52, 3
         s_lshl_b32 s40, s40, 2
         s_and_b32 s42, s53, 3
         s_add_u32 s40, s40, s42
         s_lshl_b32 s42, s42, 2
         s_lshr_b32 s41, s52, 2
         s_lshl_b32 s41, s41, 3
         s_lshr_b32 s53, s53, 2
         s_add_u32 s41, s41, s53
         s_lshl_b32 s53, s53, 1
         s_add_u32 s42, s42, s53""", 16, 'out')
    return a.text(HEADER)

if __name__ == "__main__":
    open(sys.argv[1] if len(sys.argv) > 1 else "v1.s", "w").write(build())
```

```python
import sys
from asmlib import Asm

D, F, S = 1024, 3584, 2048
WQ_OFF, XR_OFF, W2_OFF = 0, 0x800000, 0xC00000
WS_SIZE = 0x10000000

HEADER = open('standalone__weight_only_int_quip__prompt.s.ref').read().split("; Override")[0]

TL = False
def stamp(a, i):
    if TL: a(f"s_memrealtime s[{76+2*i}:{77+2*i}]")
def stamp_store(a, kid):
    if TL:
        a(f"""s_waitcnt vmcnt(0)
        s_memrealtime s[82:83]
        s_load_dwordx2 s[68:69], s[0:1], 64
        s_waitcnt lgkmcnt(0)
        s_mov_b32 s70, 0x10000000
        s_mov_b32 s71, 0x20000
        v_mov_b32 v8, s76
        v_mov_b32 v9, s78
        v_mov_b32 v10, s80
        v_mov_b32 v11, s82
        s_lshl_b32 s72, s2, 4
        s_add_u32 s72, s72, {0x8000000 + kid*0x4000}
        v_mov_b32 v12, 0
        v_cmp_eq_u32 vcc, 0, v0
        s_and_saveexec_b64 s[74:75], vcc
        s_cbranch_execz L_tl{kid}
        buffer_store_dwordx4 v[8:11], v12, s[68:71], s72 offen
        L_tl{kid}:""")
KID = [0]
def srd(a, d, lo, size):
    a(f"""s_mov_b32 s{d}, s{lo}
    s_mov_b32 s{d+1}, s{lo+1}
    s_mov_b32 s{d+2}, {size}
    s_mov_b32 s{d+3}, 0x20000""")

def prepass(a):
    NWG = 8*56
    a.kernel("prep_kernel", NWG, 256, 0, 96)
    a(f"""
    s_cmp_ge_u32 s2, {NWG}
    s_cbranch_scc1 L_prep_end
    {"s_memrealtime s[76:77]" if TL else ""}
    {"s_memrealtime s[78:79]" if TL else ""}
    s_load_dwordx2 s[4:5], s[0:1], 8
    s_load_dwordx2 s[6:7], s[0:1], 16
    s_load_dwordx2 s[8:9], s[0:1], 24
    s_load_dwordx2 s[10:11], s[0:1], 64
    s_and_b32 s30, s2, 7          ; tm
    s_lshr_b32 s31, s2, 3         ; kstep
    v_lshrrev_b32 v1, 3, v0
    v_and_b32 v2, 7, v0           ; octet
    s_mov_b32 s32, {F*4}
    v_mul_lo_u32 v3, v1, s32
    v_lshl_add_u32 v3, v2, 5, v3
    v_lshlrev_b32 v4, 4, v2
    s_mul_i32 s33, s30, {128*F*4}
    s_lshl_b32 s34, s31, 8
    s_add_u32 s33, s33, s34
    s_mul_i32 s35, s30, {F*2}
    s_lshl_b32 s34, s31, 7
    s_add_u32 s35, s35, s34
    s_waitcnt lgkmcnt(0)
    """)
    srd(a, 12, 4, D*F*4); srd(a, 16, 6, 8*F*2); srd(a, 20, 8, 8*F*2); srd(a, 24, 10, WS_SIZE)
    a("""buffer_load_dwordx4 v[8:11], v4, s[16:19], s35 offen
    buffer_load_dwordx4 v[12:15], v4, s[20:23], s35 offen""")
    for it in range(4):
        a(f"buffer_load_dwordx4 v[{32+8*it}:{35+8*it}], v3, s[12:15], s33 offen nt")
        a(f"buffer_load_dwordx4 v[{36+8*it}:{39+8*it}], v3, s[12:15], s33 offen offset:16 nt")
        if it < 3: a(f"s_add_u32 s33, s33, {32*F*4}")
    a(f"""
    v_lshrrev_b32 v5, 4, v1
    v_lshlrev_b32 v5, 10, v5        ; (v1>>4)*1024
    v_and_b32 v6, 15, v1
    v_lshl_add_u32 v5, v6, 4, v5    ; + row*16
    v_and_b32 v6, 3, v2
    v_lshl_add_u32 v5, v6, 8, v5    ; + q*256
    v_lshrrev_b32 v6, 2, v2
    v_lshl_add_u32 v5, v6, 13, v5   ; + ksub*8192
    s_mul_i32 s36, s30, 56
    s_add_u32 s36, s36, s31
    s_lshl_b32 s36, s36, 14
    s_add_u32 s36, s36, {WQ_OFF}
    s_waitcnt vmcnt(8)
    """)
    for j in range(4):
        a(f"v_lshlrev_b32 v{16+2*j}, 16, v{8+j}")
        a(f"v_and_b32 v{17+2*j}, 0xffff0000, v{8+j}")
        a(f"v_lshlrev_b32 v{24+2*j}, 16, v{12+j}")
        a(f"v_and_b32 v{25+2*j}, 0xffff0000, v{12+j}")
    for it in range(4):
        a(f"s_waitcnt vmcnt({6-2*it+it})")
        b = 32+8*it
        for j in range(8): a(f"v_cvt_f32_i32 v{b+j}, v{b+j}")
        for j in range(4):
            a(f"v_cvt_pk_bf16_f32 v{64+j}, v{b+2*j}, v{b+2*j+1}")
        for j in range(4):
            a(f"v_lshlrev_b32 v{b+2*j}, 16, v{64+j}")
            a(f"v_and_b32 v{b+2*j+1}, 0xffff0000, v{64+j}")
        for j in range(8): a(f"v_sub_f32 v{b+j}, v{b+j}, v{24+j}")
        for j in range(4):
            a(f"v_cvt_pk_bf16_f32 v{64+j}, v{b+2*j}, v{b+2*j+1}")
        for j in range(4):
            a(f"v_lshlrev_b32 v{b+2*j}, 16, v{64+j}")
            a(f"v_and_b32 v{b+2*j+1}, 0xffff0000, v{64+j}")
        for j in range(8): a(f"v_mul_f32 v{b+j}, v{b+j}, v{16+j}")
        for j in range(4):
            a(f"v_cvt_pk_bf16_f32 v{68+4*it+j}, v{b+2*j}, v{b+2*j+1}")
        a(f"buffer_store_dwordx4 v[{68+4*it}:{71+4*it}], v5, s[24:27], s36 offen offset:{(it&1)*2048}")
        if it == 1: a("s_add_u32 s36, s36, 4096")
    stamp(a, 2); stamp_store(a, 0)
    a.label("L_prep_end")
    a("s_endpgm")

class Op:
    def __init__(s, kind, BX, WX, argoff, size, pitch=0, wsoff=0):
        s.kind, s.BX, s.WX, s.argoff, s.size, s.pitch, s.wsoff = kind, BX, WX, argoff, size, pitch, wsoff
        s.bytes = BX*128
        s.ndma = BX//32
        s.nrd = WX*(2 if kind == 'T' else 1)

def gemm(a, name, nwg, A, B, GA, GB, KSTEPS, NS, mapcode, W, epi, dbg=None):
    STG = A.bytes + B.bytes
    WA, WB = A.WX, B.WX
    vr = [16]
    def valloc(n, al=1):
        while vr[0] % al: vr[0] += 1
        r = vr[0]; vr[0] += n; return r
    for o in (A, B):
        o.vdma = valloc(1 if o.kind == 'F' else o.ndma)
        o.nadr = {'F': 1, 'T': o.WX, 'R': 2}[o.kind]
        o.vbase = valloc(o.nadr); o.vrd = valloc(o.nadr)
    fr = [[valloc(4*WA, 4), valloc(4*WB, 4)] for _ in range(2)]
    acc = valloc(4*WA*WB, 4)
    nv = vr[0]
    a.kernel(name, nwg, 256, NS*STG, nv)
    L = name
    a(f"""
    s_cmp_ge_u32 s2, {nwg}
    s_cbranch_scc1 L_{L}_end
    {"s_memrealtime s[76:77]" if TL else ""}
    s_load_dwordx2 s[4:5], s[0:1], {A.argoff}
    s_load_dwordx2 s[6:7], s[0:1], {B.argoff}
    s_load_dwordx2 s[8:9], s[0:1], {48 if epi == 'out' else 64}
    v_lshrrev_b32 v1, 6, v0
    v_and_b32 v2, 63, v0        ; lane
    s_nop 0
    v_readfirstlane_b32 s43, v1  ; wave
    """)
    a(mapcode)
    a(f"""
    s_and_b32 s44, s43, {GA-1}
    s_lshr_b32 s45, s43, {GA.bit_length()-1}
    v_and_b32 v3, 15, v2        ; l&15
    v_lshrrev_b32 v4, 4, v2     ; q
    s_waitcnt lgkmcnt(0)
    """)
    srd(a, 12, 4, A.size); srd(a, 16, 6, B.size); srd(a, 20, 8, S*F*2 if epi == 'out' else WS_SIZE)
    A.srd, B.srd = 12, 16
    A.sg, B.sg = 44, 45
    A.st, B.st = 40, 41
    A.sb, B.sb = 46, 47
    A.so, B.so = 48, 49
    A.sm, B.sm = 50, 51
    A.off, B.off = 0, A.bytes
    for o in (A, B):
        if o.kind == 'F':
            o.kstride = o.bytes
            a(f"""
            s_mul_i32 s52, s43, {o.ndma*1024}
            v_lshl_add_u32 v{o.vdma}, v2, 4, s52
            s_mul_i32 s{o.sb}, s{o.st}, {KSTEPS*o.bytes}
            s_add_u32 s{o.sb}, s{o.sb}, {o.wsoff}
            s_add_u32 s{o.sm}, s52, {o.off}
            s_mul_i32 s52, s{o.sg}, {o.WX*1024}
            s_add_u32 s52, s52, {o.off}
            v_lshl_add_u32 v{o.vbase}, v2, 4, s52
            """)
        elif o.kind == 'T':
            assert o.BX == 128
            o.kstride = 64*o.pitch
            a(f"""
            s_lshl_b32 s52, s43, 4
            v_add_u32 v5, s52, v4
            s_mov_b32 s53, {o.pitch}
            v_mul_lo_u32 v5, v5, s53
            v_lshlrev_b32 v6, 1, v4
            v_xor_b32 v6, v6, v3
            v_lshl_add_u32 v7, v6, 4, v5
            v_xor_b32 v6, 8, v6
            v_lshl_add_u32 v8, v6, 4, v5
            """)
            for ii in range(4):
                a(f"v_add_u32 v{o.vdma+ii}, {ii*(4*o.pitch-1024)}, v{7 if ii < 2 else 8}")
            a(f"""
            s_lshl_b32 s{o.sb}, s{o.st}, 8
            s_lshl_b32 s{o.sm}, s43, 12
            s_add_u32 s{o.sm}, s{o.sm}, {o.off}
            v_lshrrev_b32 v5, 2, v3
            v_lshl_add_u32 v6, v4, 3, v5       ; k_l
            v_lshlrev_b32 v6, 8, v6            ; *256
            v_and_b32 v7, 3, v2
            v_lshl_add_u32 v6, v7, 3, v6       ; + cc*8
            v_add_u32 v6, {o.off}, v6
            v_and_b32 v7, 1, v4
            v_lshl_or_b32 v5, v7, 2, v5        ; g
            s_mul_i32 s52, s{o.sg}, {o.WX}
            """)
            for b in range(o.WX):
                a(f"""s_add_u32 s53, s52, {b}
                v_xor_b32 v7, s53, v5
                v_lshl_add_u32 v{o.vbase+b}, v7, 5, v6""")
        else:
            o.kstride = 128
            assert o.ndma == 4
            a(f"""
            v_lshrrev_b32 v5, 3, v2            ; r
            v_and_b32 v6, 7, v2                ; p
            v_lshrrev_b32 v7, 1, v5
            v_xor_b32 v6, v6, v7
            s_mul_i32 s52, s43, {o.BX//4}
            v_add_u32 v5, s52, v5
            s_mov_b32 s53, {o.pitch}
            v_mul_lo_u32 v5, v5, s53
            v_lshl_add_u32 v7, v6, 4, v5
            v_xor_b32 v6, 4, v6
            v_lshl_add_u32 v8, v6, 4, v5
            """)
            for ii in range(4):
                a(f"v_add_u32 v{o.vdma+ii}, {ii*(8*o.pitch-1024)}, v{7 if ii % 2 == 0 else 8}")
            a(f"""
            s_mul_i32 s{o.sb}, s{o.st}, {o.BX*o.pitch}
            s_mul_i32 s{o.sm}, s43, {o.ndma*1024}
            s_add_u32 s{o.sm}, s{o.sm}, {o.off}
            s_mul_i32 s52, s{o.sg}, {o.WX*2048}
            s_add_u32 s52, s52, {o.off}
            v_lshl_add_u32 v5, v3, 7, s52
            v_lshrrev_b32 v6, 1, v3
            v_xor_b32 v6, v6, v4
            v_lshl_add_u32 v{o.vbase}, v6, 4, v5
            v_xor_b32 v6, 4, v6
            v_lshl_add_u32 v{o.vbase+1}, v6, 4, v5
            """)
    def dma_setup():
        return [f"s_add_u32 s52, s54, s42", f"s_and_b32 s52, s52, {W-1}", f"s_andn2_b32 s53, s54, {W-1}", f"s_or_b32 s52, s52, s53",
                f"s_mul_i32 s{A.so}, s52, {A.kstride}", f"s_add_u32 s{A.so}, s{A.so}, s{A.sb}",
                f"s_mul_i32 s{B.so}, s52, {B.kstride}", f"s_add_u32 s{B.so}, s{B.so}, s{B.sb}",
                f"s_cmp_lt_u32 s54, {KSTEPS}", f"s_cselect_b32 s14, s14, 0", f"s_cselect_b32 s18, s18, 0",
                f"s_cselect_b32 s{A.so}, s{A.so}, 0", f"s_cselect_b32 s{B.so}, s{B.so}, 0"]
    def dma_instrs():
        g = []
        for o in (A, B):
            for ii in range(o.ndma):
                pre = []
                if ii == 0: pre = [f"s_add_u32 m0, s{o.sm}, s55", "s_nop 0"]
                elif ii % 4 == 0: pre = [f"s_add_u32 m0, m0, 4096", f"s_add_u32 s{o.so}, s{o.so}, 4096"]
                v = o.vdma if o.kind == 'F' else o.vdma+ii
                g.append(pre + [f"buffer_load_dwordx4 v{v}, s[{o.srd}:{o.srd+3}], s{o.so} offen offset:{(ii%4)*1024} lds"])
        return g
    def dma_adv():
        return [f"s_add_u32 s54, s54, 1", f"s_add_u32 s55, s55, {STG}", f"s_cmp_eq_u32 s55, {NS*STG}", f"s_cselect_b32 s55, 0, s55"]
    def reads(setn, ksub):
        r = []
        for oi, o in enumerate((A, B)):
            f = fr[setn][oi]
            for x in range(o.WX):
                if o.kind == 'F': r.append(f"ds_read_b128 v[{f+4*x}:{f+4*x+3}], v{o.vrd} offset:{(ksub*(o.BX//16)+x)*1024}")
                elif o.kind == 'R': r.append(f"ds_read_b128 v[{f+4*x}:{f+4*x+3}], v{o.vrd+ksub} offset:{x*2048}")
                else:
                    for t in range(2):
                        r.append(f"ds_read_b64_tr_b16 v[{f+4*x+2*t}:{f+4*x+2*t+1}], v{o.vrd+x} offset:{ksub*8192+t*1024}")
        return r
    def mfmas(setn):
        m = []
        for x in range(WA):
            for y in range(WB):
                c = acc + 4*(x*WB+y)
                m.append(f"v_mfma_f32_16x16x32_bf16 v[{c}:{c+3}], v[{fr[setn][0]+4*x}:{fr[setn][0]+4*x+3}], v[{fr[setn][1]+4*y}:{fr[setn][1]+4*y+3}], v[{c}:{c+3}]")
        return m
    def upd_rd():
        r = []
        for o in (A, B):
            for i in range(o.nadr): r.append(f"v_add_u32 v{o.vrd+i}, s56, v{o.vbase+i}")
        return r
    def interleave(ms, fill):
        n = len(ms); k = len(fill); out = []; j = 0
        for i, m in enumerate(ms):
            out.append(m)
            tgt = (k*(i+1) + n-1)//n if k > n else min(k, i+1)
            while j < tgt:
                out += fill[j]; j += 1
        while j < k: out += fill[j]; j += 1
        return out
    per = A.ndma + B.ndma
    a("s_mov_b32 s54, 0\ns_mov_b32 s55, 0\ns_mov_b32 s56, 0\ns_mov_b32 s57, 0")
    for st in range(NS):
        for i in dma_setup(): a(i)
        for g in dma_instrs():
            for i in g: a(i)
        for i in dma_adv(): a(i)
    for i in range(4*WA*WB): a(f"v_mov_b32 v{acc+i}, 0")
    for i in upd_rd(): a(i)
    a(f"s_waitcnt vmcnt({(NS-1)*per})\ns_barrier")
    for i in reads(0, 0): a(i)
    dbg = dbg or {}
    stamp(a, 1)
    if dbg.get('time'): a("s_memtime s[60:61]\ns_memrealtime s[64:65]")
    a.label(f"L_{L}_loop")
    _a = a
    class Filt:
        def __call__(self, s):
            for l in s.split("\n"):
                l = l.strip()
                if dbg.get('nodma') and l.startswith('buffer_load'): continue
                if dbg.get('nomfma') and l.startswith('v_mfma'): continue
                if dbg.get('noread') and l.startswith('ds_read'): continue
                if dbg.get('nobar') and l.startswith('s_barrier'): continue
                _a(l)
        def label(self, n): _a.label(n)
    a = Filt()
    a("s_waitcnt lgkmcnt(0)")
    adv_rd = [f"s_add_u32 s56, s56, {STG}", f"s_cmp_eq_u32 s56, {NS*STG}", f"s_cselect_b32 s56, 0, s56"]
    fill = [[r] for r in reads(1, 1)] + [adv_rd] + [[u] for u in upd_rd()] + [dma_setup()[:4], dma_setup()[4:8], dma_setup()[8:]]
    for i in interleave(mfmas(0), fill): a(i)
    a(f"s_waitcnt vmcnt({(NS-2)*per}) lgkmcnt(0)\ns_barrier")
    fill = [[r] for r in reads(0, 0)] + dma_instrs() + [dma_adv()]
    for i in interleave(mfmas(1), fill): a(i)
    a(f"""s_add_u32 s57, s57, 1
    s_cmp_lt_u32 s57, {KSTEPS}
    s_cbranch_scc1 L_{L}_loop
    s_waitcnt vmcnt(0) lgkmcnt(0)
    s_nop 15
    """)
    a = _a
    stamp(a, 2)
    if dbg.get('time'):
        a(f"""s_memtime s[62:63]
        s_memrealtime s[66:67]
        s_load_dwordx2 s[68:69], s[0:1], 64
        s_waitcnt lgkmcnt(0)
        s_sub_u32 s62, s62, s60
        s_sub_u32 s66, s66, s64
        s_mov_b32 s70, 0x10000000
        s_mov_b32 s71, 0x20000
        v_mov_b32 v10, s62
        v_mov_b32 v11, s66
        s_lshl_b32 s72, s2, 2
        s_add_u32 s72, s72, {0x8000000}
        v_mov_b32 v12, 0
        buffer_store_dword v10, v12, s[68:71], s72 offen
        buffer_store_dword v11, v12, s[68:71], s72 offen offset:2048
        """)
    t = fr[0][0]
    def C(x, y, i): return acc + 4*(x*WB+y) + i
    if epi == 'xr':
        a(f"""
        v_lshlrev_b32 v5, 4, v2
        s_lshl_b32 s52, s41, 5
        s_lshl_b32 s53, s40, 2
        s_add_u32 s52, s52, s53
        s_lshl_b32 s53, s44, 1
        s_add_u32 s52, s52, s53
        s_lshl_b32 s52, s52, 3
        s_lshl_b32 s53, s45, 2
        s_add_u32 s52, s52, s53
        s_lshl_b32 s52, s52, 10
        s_add_u32 s52, s52, {XR_OFF}
        """)
        n = 0
        for p in range(WA//2):
            for y in range(WB):
                r = t + 4*(n % 8); n += 1
                a(f"""v_cvt_pk_bf16_f32 v{r}, v{C(2*p,y,0)}, v{C(2*p,y,1)}
                v_cvt_pk_bf16_f32 v{r+1}, v{C(2*p,y,2)}, v{C(2*p,y,3)}
                v_cvt_pk_bf16_f32 v{r+2}, v{C(2*p+1,y,0)}, v{C(2*p+1,y,1)}
                v_cvt_pk_bf16_f32 v{r+3}, v{C(2*p+1,y,2)}, v{C(2*p+1,y,3)}
                buffer_store_dwordx4 v[{r}:{r+3}], v5, s[20:23], s52 offen offset:{y*1024}""")
            a("s_add_u32 s52, s52, 8192")
    elif epi == 'w2':
        a(f"""
        s_lshl_b32 s52, s41, 7
        s_lshl_b32 s53, s45, 6
        s_add_u32 s52, s52, s53
        v_add_u32 v5, s52, v3              ; n for y=0
        s_lshl_b32 s52, s40, 2
        s_lshl_b32 s53, s44, 1
        s_add_u32 s52, s52, s53            ; kk0
        s_mul_i32 s52, s52, {14*1024}
        s_add_u32 s52, s52, {W2_OFF}
        s_add_u32 s53, s52, {14*1024}
        s_mov_b32 s58, 9363                ; n*9363>>20 = n/112 for n<3584
        """)
        n = 0
        for y in range(WB):
            a(f"""
            v_add_u32 v6, {16*y}, v5
            v_mul_u32_u24 v7, s58, v6
            v_lshrrev_b32 v7, 20, v7          ; G
            v_mul_u32_u24 v8, 112, v7
            v_sub_u32 v6, v6, v8              ; n'
            v_lshrrev_b32 v8, 1, v7           ; T
            v_mul_u32_u24 v8, {32*14}, v8
            v_and_b32 v7, 1, v7
            v_mad_u32_u24 v8, v7, 7, v8       ; T*448 + (G&1)*7
            v_lshrrev_b32 v7, 5, v6
            v_lshlrev_b32 v7, 1, v7
            v_bfe_u32 v9, v6, 2, 1
            v_add_u32 v7, v7, v9              ; blk
            v_bfe_u32 v9, v6, 3, 2
            v_and_b32 v10, 3, v6
            v_lshl_add_u32 v9, v9, 2, v10     ; row
            v_subrev_u32 v10, 96, v6
            v_cmp_gt_u32 vcc, 96, v6
            s_nop 1
            v_cndmask_b32 v7, 6, v7, vcc
            v_cndmask_b32 v9, v10, v9, vcc
            v_add_u32 v8, v8, v7
            v_lshlrev_b32 v8, 10, v8
            v_lshl_add_u32 v9, v4, 4, v9
            v_lshl_add_u32 v8, v9, 4, v8
            """)
            for p in range(WA//2):
                r = t + 4*(n % 8); n += 1
                a(f"""v_cvt_pk_bf16_f32 v{r}, v{C(2*p,y,0)}, v{C(2*p,y,1)}
                v_cvt_pk_bf16_f32 v{r+1}, v{C(2*p,y,2)}, v{C(2*p,y,3)}
                v_cvt_pk_bf16_f32 v{r+2}, v{C(2*p+1,y,0)}, v{C(2*p+1,y,1)}
                v_cvt_pk_bf16_f32 v{r+3}, v{C(2*p+1,y,2)}, v{C(2*p+1,y,3)}
                buffer_store_dwordx4 v[{r}:{r+3}], v8, s[20:23], s{52+p} offen""")
    else:
        assert WA == 7
        a(f"""
        v_mul_u32_u24 v5, {F*2}, v3
        v_lshl_add_u32 v6, v4, 3, v5
        v_lshl_add_u32 v5, v4, 4, v5
        s_mul_i32 s52, s41, {B.BX}
        s_mul_i32 s53, s45, {WB*16}
        s_add_u32 s52, s52, s53
        s_mul_i32 s52, s52, {F*2}
        s_mul_i32 s53, s40, {A.BX*2}
        s_add_u32 s52, s52, s53
        s_mul_i32 s53, s44, {WA*32}
        s_add_u32 s52, s52, s53
        """)
        n = 0
        for y in range(WB):
            for p in range(3):
                r = t + 4*(n % 8); n += 1
                a(f"""v_cvt_pk_bf16_f32 v{r}, v{C(2*p,y,0)}, v{C(2*p,y,1)}
                v_cvt_pk_bf16_f32 v{r+1}, v{C(2*p,y,2)}, v{C(2*p,y,3)}
                v_cvt_pk_bf16_f32 v{r+2}, v{C(2*p+1,y,0)}, v{C(2*p+1,y,1)}
                v_cvt_pk_bf16_f32 v{r+3}, v{C(2*p+1,y,2)}, v{C(2*p+1,y,3)}
                buffer_store_dwordx4 v[{r}:{r+3}], v5, s[20:23], s52 offen offset:{64*p}""")
            r = t + 4*(n % 8); n += 1
            a(f"""v_cvt_pk_bf16_f32 v{r}, v{C(6,y,0)}, v{C(6,y,1)}
            v_cvt_pk_bf16_f32 v{r+1}, v{C(6,y,2)}, v{C(6,y,3)}
            buffer_store_dwordx2 v[{r}:{r+1}], v6, s[20:23], s52 offen offset:192""")
            a(f"s_add_u32 s52, s52, {16*F*2}")
    KID[0] += 1; stamp_store(a, KID[0])
    a.label(f"L_{L}_end")
    a("s_endpgm")

def build(dbg2=None, dbg3=None):
    a = Asm()
    prepass(a)
    gemm(a, "a1_kernel", 128, Op('T', 128, 4, 32, D*D*2, pitch=D*2), Op('R', 128, 4, 0, S*D*2, pitch=D*2), 2, 2, 16, 4,
         """s_and_b32 s52, s2, 7
         s_lshr_b32 s53, s2, 3
         s_and_b32 s40, s53, 7
         s_lshr_b32 s53, s53, 3
         s_lshl_b32 s41, s52, 1
         s_add_u32 s41, s41, s53
         s_lshl_b32 s42, s40, 1
         s_lshl_b32 s53, s53, 3
         s_add_u32 s42, s42, s53""", 16, 'xr')
    gemm(a, "a2_kernel", 224, Op('F', 128, 4, 64, WS_SIZE, wsoff=WQ_OFF), Op('T', 128, 4, 40, F*F*2, pitch=F*2), 2, 2, 56, 4,
         """s_and_b32 s52, s2, 7
         s_lshr_b32 s53, s2, 3
         s_mul_i32 s52, s52, 28
         s_add_u32 s52, s52, s53
         s_and_b32 s40, s52, 7
         s_lshr_b32 s41, s52, 3
         s_lshl_b32 s42, s41, 1
         s_add_u32 s42, s42, s40""", 8, 'w2', dbg2)
    gemm(a, "b_kernel", 256, Op('F', 224, 7, 64, WS_SIZE, wsoff=W2_OFF), Op('F', 128, 4, 64, WS_SIZE, wsoff=XR_OFF), 2, 2, 16, 3,
         """s_and_b32 s52, s2, 7
         s_lshr_b32 s53, s2, 3
         s_and_b32 s40, s52, 3
         s_lshl_b32 s40, s40, 2
         s_and_b32 s42, s53, 3
         s_add_u32 s40, s40, s42
         s_lshl_b32 s42, s42, 2
         s_lshr_b32 s41, s52, 2
         s_lshl_b32 s41, s41, 3
         s_lshr_b32 s53, s53, 2
         s_add_u32 s41, s41, s53
         s_lshl_b32 s53, s53, 1
         s_add_u32 s42, s42, s53""", 16, 'out', dbg3)
    return a.text(HEADER)

if __name__ == "__main__":
    if len(sys.argv) > 1 and sys.argv[1] == "exp":
        cf = {"base": {}, "nodma": {'nodma':1}, "nomfma": {'nomfma':1}, "noread": {'noread':1}, "nobar": {'nobar':1},
              "nodma_noread": {'nodma':1,'noread':1}, "nodma_nobar": {'nodma':1,'nobar':1}, "onlydma": {'nomfma':1,'noread':1}, "mfmaonly": {'nodma':1,'noread':1,'nobar':1}}
        for n, c in cf.items():
            c['time'] = 1
            open(f"e1_{n}.s", "w").write(build(dbg2=c) if sys.argv[2] == "a2" else build(dbg3=c))
        print(" ".join(f"e1_{n}.s" for n in cf))
    elif len(sys.argv) > 1 and sys.argv[1] == "tl":
        TL = True
        open("v1tl.s", "w").write(build())
    else:
        open(sys.argv[1] if len(sys.argv) > 1 else "v1.s", "w").write(build())
```

```python
import gen1
from gen1 import *
def empty(a, name):
    a.kernel(name, 256, 64, 0, 8)
    a("s_endpgm")
def stream(a, name, argoff, nbytes, flags):
    per = nbytes // 256
    a.kernel(name, 256, 256, 16384, 16)
    a(f"""
    s_cmp_ge_u32 s2, 256
    s_cbranch_scc1 L_{name}_end
    s_load_dwordx2 s[4:5], s[0:1], {argoff}
    v_lshlrev_b32 v1, 4, v0
    v_lshrrev_b32 v2, 6, v0
    s_nop 0
    v_readfirstlane_b32 s20, v2
    s_lshl_b32 s20, s20, 10
    s_mov_b32 m0, s20
    s_mul_i32 s21, s2, {per}
    s_mov_b32 s22, 0
    s_waitcnt lgkmcnt(0)
    s_mov_b32 s8, s4
    s_mov_b32 s9, s5
    s_mov_b32 s10, {nbytes}
    s_mov_b32 s11, 0x20000
    L_{name}_loop:
    buffer_load_dwordx4 v1, s[8:11], s21 offen {flags} lds
    s_add_u32 s21, s21, 4096
    s_add_u32 s22, s22, 4096
    s_waitcnt vmcnt(30)
    s_cmp_lt_u32 s22, {per}
    s_cbranch_scc1 L_{name}_loop
    s_waitcnt vmcnt(0)
    L_{name}_end:
    s_endpgm
    """)
def variant(pre, post):
    import asmlib
    orig = gen1.prepass
    def pp(a):
        pre(a); orig(a)
    gen1.prepass = pp
    t = gen1.build()
    gen1.prepass = orig
    return t
open("p_base.s","w").write(variant(lambda a: None, None))
open("p_empty1.s","w").write(variant(lambda a: empty(a, "e1_kernel"), None))
open("p_empty4.s","w").write(variant(lambda a: [empty(a, f"e{i}_kernel") for i in range(4)], None))
open("p_ws64.s","w").write(variant(lambda a: stream(a, "st_kernel", 64, 64<<20, ""), None))
open("p_ws64nt.s","w").write(variant(lambda a: stream(a, "st_kernel", 64, 64<<20, "nt"), None))
open("p_V.s","w").write(variant(lambda a: stream(a, "st_kernel", 40, 24<<20, ""), None))
open("p_Vnt.s","w").write(variant(lambda a: stream(a, "st_kernel", 40, 24<<20, "nt"), None))
```

```python
import sys
from asmlib import Asm

D, F, S = 1024, 3584, 2048
WQ_OFF, XR_OFF, W2_OFF, FLG = 0, 0x800000, 0xC00000, 0x1500000
PF, AF, XF = FLG, FLG + 0x1000, FLG + 0x2000
WS_SIZE = 0x10000000
HEADER = open('standalone__weight_only_int_quip__prompt.s.ref').read().split("; Override")[0]
P_X, P_QW, P_SC, P_Z, P_U, P_V, P_OUT, P_DBG, P_WS = 4, 6, 8, 10, 12, 14, 16, 18, 20
SRD_A, SRD_B, SRD_WS, SRD_M = 24, 28, 32, 36
S_TA, S_TB, S_RES, S_WAVE, S_GA, S_GB = 40, 41, 42, 43, 44, 45
S_NONCE, S_XCD, S_IDX, S_LW = 65, 66, 67, 59
SPIN_MAX = 1 << 16

class Cfg:
    TL = False
    fused = True
    dbg = {}
C = Cfg()

def srd(a, d, lo, size):
    a(f"""s_mov_b32 s{d}, s{lo}
    s_mov_b32 s{d+1}, s{lo+1}
    s_mov_b32 s{d+2}, {size}
    s_mov_b32 s{d+3}, 0x20000""")

def stamp(a, i):
    if C.TL: a(f"s_memrealtime s[{76+2*i}:{77+2*i}]")
def stamp_store(a, kid, lbl, n):
    if C.TL:
        a("s_waitcnt vmcnt(0)")
        stamp(a, n-1)
        a("s_waitcnt lgkmcnt(0)")
        for i in range(8): a(f"v_mov_b32 v{8+i}, s{76+2*min(i,n-1)}")
        a(f"""s_lshl_b32 s72, s2, 5
        s_add_u32 s72, s72, {0x8000000 + kid*0x4000}
        v_mov_b32 v7, 0
        v_cmp_eq_u32 vcc, 0, v0
        s_and_saveexec_b64 s[74:75], vcc
        s_cbranch_execz L_tl{lbl}
        buffer_store_dwordx4 v[8:11], v7, s[{SRD_WS}:{SRD_WS+3}], s72 offen
        buffer_store_dwordx4 v[12:15], v7, s[{SRD_WS}:{SRD_WS+3}], s72 offen offset:16
        L_tl{lbl}:""")

class Op:
    def __init__(s, kind, BX, WX, ptr, size, pitch=0, wsoff=0, flags="", tstride=0):
        s.kind, s.BX, s.WX, s.ptr, s.size, s.pitch, s.wsoff, s.flags, s.tstride = kind, BX, WX, ptr, size, pitch, wsoff, flags, tstride
        s.bytes = BX*128
        s.ndma = BX//8
        s.q = s.ndma//4

class Gemm:
    def __init__(g, name, A, B, KS, NS, NT, n, epi):
        g.name, g.A, g.B, g.KS, g.NS, g.NT, g.n, g.epi = name, A, B, KS, NS, NT, n, epi
        g.LA = NS-1
        A.off, B.off = 0, NS*A.bytes
        g.lds = NS*(A.bytes+B.bytes)
        A.srd, B.srd = SRD_A, SRD_B
        A.st, B.st = S_TA, S_TB
        A.sb, B.sb = 46, 47
        A.so, B.so = 48, 49
        A.nx, B.nx = 62, 63
        A.sm, B.sm = 55, 56
        A.vd, B.vd = 16, 20
        A.sg, B.sg = S_GA, S_GB
        for o in (A, B):
            if o.kind == 'F': o.kstride, o.gstride = o.bytes, 4096
            elif o.kind == 'T': o.kstride, o.gstride = 64*o.pitch, 16*o.pitch
            else: o.kstride, o.gstride = 128, 32*o.pitch
        vr = [16]
        def valloc(k, al=1):
            while vr[0] % al: vr[0] += 1
            r = vr[0]; vr[0] += k; return r
        for o in (A, B):
            o.nadr = {'F': 1, 'T': o.WX, 'R': 2}[o.kind]
            o.spr = max(1, 65536 // o.bytes)
            o.nrange = (NS + o.spr - 1)//o.spr
            o.vrd = valloc(o.nadr*o.nrange)
        g.fr = [[valloc(4*A.WX, 4), valloc(4*B.WX, 4)] for _ in range(2)]
        g.acc = valloc(4*A.WX*B.WX, 4)
        g.nv = vr[0]

    def ld_init(g, a):
        A, B = g.A, g.B
        srd(a, A.srd, A.ptr, A.size); srd(a, B.srd, B.ptr, B.size)
        for o in (A, B):
            if o.kind == 'F':
                a(f"""v_lshlrev_b32 v{o.vd}, 4, v2
                s_mul_i32 s{o.sb}, s{o.st}, {g.KS*o.bytes}
                s_mul_i32 s52, s{S_LW}, {o.q*1024}
                s_add_u32 s52, s52, {o.wsoff}
                s_add_u32 s{o.sb}, s{o.sb}, s52""")
            elif o.kind == 'T':
                assert o.BX == 128
                a(f"""v_mul_u32_u24 v5, {o.pitch}, v4
                v_lshlrev_b32 v6, 1, v4
                v_xor_b32 v6, v6, v3
                v_lshl_add_u32 v7, v6, 4, v5
                v_xor_b32 v6, 8, v6
                v_lshl_add_u32 v8, v6, 4, v5""")
                for ii in range(4):
                    a(f"v_add_u32 v{o.vd+ii}, {ii*(4*o.pitch-1024)}, v{7 if ii < 2 else 8}")
                a(f"""s_lshl_b32 s{o.sb}, s{o.st}, 8
                s_mul_i32 s52, s{S_LW}, {o.q//4*o.gstride}
                s_add_u32 s{o.sb}, s{o.sb}, s52""")
            else:
                a(f"""v_lshrrev_b32 v5, 3, v2
                v_and_b32 v6, 7, v2
                v_lshrrev_b32 v7, 1, v5
                v_xor_b32 v6, v6, v7
                v_mul_u32_u24 v5, {o.pitch}, v5
                v_lshl_add_u32 v7, v6, 4, v5
                v_xor_b32 v6, 4, v6
                v_lshl_add_u32 v8, v6, 4, v5""")
                for ii in range(4):
                    a(f"v_add_u32 v{o.vd+ii}, {ii*(8*o.pitch-1024)}, v{7 if ii % 2 == 0 else 8}")
                a(f"""s_mul_i32 s{o.sb}, s{o.st}, {o.BX*o.pitch}
                s_mul_i32 s52, s{S_LW}, {o.q//4*o.gstride}
                s_add_u32 s{o.sb}, s{o.sb}, s52""")
        a(f"""s_mul_i32 s50, s{S_LW}, {A.q*1024}
        s_mul_i32 s51, s{S_LW}, {B.q*1024}
        s_add_u32 s51, s51, {B.off}
        s_add_u32 s57, s50, {g.NS*A.bytes}
        s_add_u32 s58, s{S_RES}, {g.KS-g.n}""")
        g.ld_rewind(a)
    def ld_rewind(g, a):
        a(f"""s_mov_b32 s54, 0
        s_mov_b32 s55, s50
        s_mov_b32 s56, s51""")
        a(g.setup())
    def setup(g):
        A, B, n = g.A, g.B, g.n
        t = ""
        if g.NT > 1: t += f"s_and_b32 s60, s54, {g.KS-1}\n"
        j = "s60" if g.NT > 1 else "s54"
        t += f"""s_sub_u32 s52, {j}, 1
        s_and_b32 s53, s52, {n-1}
        s_cmp_eq_u32 s53, s{S_RES}
        s_cselect_b32 s53, {n}, 0
        s_cmp_ge_u32 s52, s58
        s_cselect_b32 s53, 1, s53
        s_add_u32 s52, s52, s53
        s_cmp_eq_u32 {j}, 0
        s_cselect_b32 s52, s{S_RES}, s52
        s_mul_i32 s{A.nx}, s52, {A.kstride}
        s_add_u32 s{A.nx}, s{A.nx}, s{A.sb}
        s_mul_i32 s{B.nx}, s52, {B.kstride}
        s_add_u32 s{B.nx}, s{B.nx}, s{B.sb}"""
        if g.NT > 1:
            t += f"\ns_lshr_b32 s53, s54, {g.KS.bit_length()-1}"
            for o in (A, B):
                if o.tstride: t += f"\ns_mul_i32 s52, s53, {o.tstride}\ns_add_u32 s{o.nx}, s{o.nx}, s52"
        return t
    def issue(g, a, ops=None):
        A, B = g.A, g.B
        ops = ops or (A, B)
        cnt = 0
        adv = f"""s_add_u32 s55, s55, {A.bytes}
        s_add_u32 s56, s56, {B.bytes}
        s_cmp_eq_u32 s55, s57
        s_cselect_b32 s55, s50, s55
        s_cselect_b32 s56, s51, s56
        s_cmp_lt_u32 s54, {g.KS*g.NT}
        s_cselect_b32 s64, 1, 0"""
        for k, o in enumerate(ops):
            for i in range(o.q):
                if i == 0:
                    a(f"s_mov_b32 m0, s{o.sm}")
                    if k == 0: a(f"s_mov_b32 s{A.so}, s{A.nx}\ns_mov_b32 s{B.so}, s{B.nx}")
                    else: a("s_nop 0")
                elif i % 4 == 0: a(f"s_add_u32 m0, m0, 4096\ns_add_u32 s{o.so}, s{o.so}, {o.gstride}")
                v = o.vd if o.kind == 'F' else o.vd + i % 4
                a(f"buffer_load_dwordx4 v{v}, s[{o.srd}:{o.srd+3}], s{o.so} offen offset:{(i%4)*1024} {o.flags} lds")
                if k == 0 and i == 1:
                    a("s_add_u32 s54, s54, 1")
                    a(g.setup())
                if k == len(ops)-1 and i == (2 if k == 0 else 0): a(adv)
    def ld_main(g, a, pre=None):
        A, B, LA, L = g.A, g.B, g.LA, g.name
        pw = A.q + B.q
        if pre is None:
            for e in range(LA): g.issue(a)
            a(f"s_waitcnt vmcnt({(LA-1)*pw})\ns_barrier")
        else:
            o = A if pre is B else B
            g.ld_rewind(a)
            for e in range(LA): g.issue(a, (o,))
            a(f"s_waitcnt vmcnt({(LA-1)*o.q})\ns_barrier")
            for e in range(LA-2):
                g.issue(a)
                a(f"s_waitcnt vmcnt({(LA-2-e)*o.q + (e+1)*pw})\ns_barrier")
        a.label(f"L_{L}_go")
        g.issue(a)
        a(f"""s_cmp_eq_u32 s64, 1
        s_waitcnt vmcnt({(LA-1)*pw})
        s_barrier
        s_cbranch_scc1 L_{L}_go""")
        for e in range(LA-2, -1, -1):
            a(f"s_waitcnt vmcnt({e*pw})\ns_barrier")
        a("s_barrier")

    def co_init(g, a):
        for o in (g.A, g.B):
            if o.kind == 'F':
                a(f"""s_mul_i32 s52, s{o.sg}, {o.WX*1024}
                s_add_u32 s52, s52, {o.off}
                v_lshl_add_u32 v{o.vrd}, v2, 4, s52""")
            elif o.kind == 'T':
                a(f"""v_lshrrev_b32 v5, 2, v3
                v_lshl_add_u32 v6, v4, 3, v5
                v_lshlrev_b32 v6, 8, v6
                v_and_b32 v7, 3, v2
                v_lshl_add_u32 v6, v7, 3, v6
                v_add_u32 v6, {o.off}, v6
                v_and_b32 v7, 1, v4
                v_lshl_or_b32 v5, v7, 2, v5
                s_mul_i32 s52, s{o.sg}, {o.WX}""")
                for b in range(o.WX):
                    a(f"""s_add_u32 s53, s52, {b}
                    v_xor_b32 v7, s53, v5
                    v_lshl_add_u32 v{o.vrd+b}, v7, 5, v6""")
            else:
                a(f"""s_mul_i32 s52, s{o.sg}, {o.WX*2048}
                s_add_u32 s52, s52, {o.off}
                v_lshl_add_u32 v5, v3, 7, s52
                v_lshrrev_b32 v6, 1, v3
                v_xor_b32 v6, v6, v4
                v_lshl_add_u32 v{o.vrd}, v6, 4, v5
                v_xor_b32 v6, 4, v6
                v_lshl_add_u32 v{o.vrd+1}, v6, 4, v5""")
            for rg in range(1, o.nrange):
                for i in range(o.nadr):
                    a(f"v_add_u32 v{o.vrd+rg*o.nadr+i}, {rg*o.spr*o.bytes}, v{o.vrd+i}")
        g.zero(a)
    def zero(g, a):
        for i in range(4*g.A.WX*g.B.WX): a(f"v_mov_b32 v{g.acc+i}, 0")
    def reads(g, setn, slot, ksub):
        r = []
        for oi, o in enumerate((g.A, g.B)):
            f = g.fr[setn][oi]
            rg = slot // o.spr; so = (slot % o.spr)*o.bytes; vb = o.vrd + rg*o.nadr
            for x in range(o.WX):
                if o.kind == 'F': r.append(f"ds_read_b128 v[{f+4*x}:{f+4*x+3}], v{vb} offset:{so+(ksub*(o.BX//16)+x)*1024}")
                elif o.kind == 'R': r.append(f"ds_read_b128 v[{f+4*x}:{f+4*x+3}], v{vb+ksub} offset:{so+x*2048}")
                else:
                    for t in range(2):
                        r.append(f"ds_read_b64_tr_b16 v[{f+4*x+2*t}:{f+4*x+2*t+1}], v{vb+x} offset:{so+ksub*8192+t*1024}")
        return r
    def mfmas(g, setn):
        WA, WB = g.A.WX, g.B.WX
        m = []
        for x in range(WA):
            for yy in range(WB):
                y = yy if x % 2 == 0 else WB-1-yy
                c = g.acc + 4*(x*WB+y)
                fa, fb = g.fr[setn][0]+4*x, g.fr[setn][1]+4*y
                m.append(f"v_mfma_f32_16x16x32_bf16 v[{c}:{c+3}], v[{fa}:{fa+3}], v[{fb}:{fb+3}], v[{c}:{c+3}]")
        return m
    def co_main(g, a, st_loop=None, st_end=None):
        L, NS = g.name, g.NS
        def inter(ms, fill):
            out = []
            for i, m in enumerate(ms):
                out.append(m)
                if i < len(fill): out += fill[i]
            assert len(fill) <= len(ms)
            return out
        a("s_mov_b32 s57, 0\ns_mov_b32 s58, 0\ns_barrier")
        if st_loop is not None: stamp(a, st_loop)
        for i in g.reads(0, 0, 0): a(i)
        for sl in range(NS):
            a.label(f"L_{L}_c{sl}")
            a("s_waitcnt lgkmcnt(0)")
            fill = [[r] for r in g.reads(1, sl, 1)] + [["s_add_u32 s57, s57, 1", f"s_cmp_lt_u32 s57, {g.KS}"]]
            for i in inter(g.mfmas(0), fill): a(i)
            a("s_waitcnt lgkmcnt(0)\ns_barrier")
            for i in inter(g.mfmas(1), [[r] for r in g.reads(0, (sl+1) % NS, 0)]): a(i)
            if sl < NS-1: a(f"s_cbranch_scc0 L_{L}_done")
            else: a(f"s_cbranch_scc1 L_{L}_c0")
        a.label(f"L_{L}_done")
        a("s_nop 7")
        if st_end is not None: stamp(a, st_end)
        g.epilogue(a)
        if g.NT > 1:
            assert g.NT == 2
            a(f"""s_cmp_eq_u32 s58, 1
            s_cbranch_scc1 L_{L}_fin
            s_mov_b32 s58, 1
            s_mov_b32 s57, 0
            s_add_u32 s{S_TA}, s{S_TA}, 1""")
            g.zero(a)
            a(f"s_branch L_{L}_c{g.KS % NS}")
            a.label(f"L_{L}_fin")
        a("s_waitcnt lgkmcnt(0)")
    def epilogue(g, a):
        A, B, WA, WB = g.A, g.B, g.A.WX, g.B.WX
        t = g.fr[1][0]
        sc = "sc1" if C.fused else ""
        def Cc(x, y, i): return g.acc + 4*(x*WB+y) + i
        def pack(r, p, y):
            return f"""v_cvt_pk_bf16_f32 v{r}, v{Cc(2*p,y,0)}, v{Cc(2*p,y,1)}
                v_cvt_pk_bf16_f32 v{r+1}, v{Cc(2*p,y,2)}, v{Cc(2*p,y,3)}
                v_cvt_pk_bf16_f32 v{r+2}, v{Cc(2*p+1,y,0)}, v{Cc(2*p+1,y,1)}
                v_cvt_pk_bf16_f32 v{r+3}, v{Cc(2*p+1,y,2)}, v{Cc(2*p+1,y,3)}"""
        W = f"s[{SRD_WS}:{SRD_WS+3}]"
        n = 0
        if g.epi == 'xr':
            a(f"""v_lshlrev_b32 v5, 4, v2
            s_mul_i32 s52, s{S_TB}, {B.BX//16}
            s_mul_i32 s53, s{S_GB}, {WB}
            s_add_u32 s52, s52, s53
            s_lshr_b32 s53, s52, 3
            s_lshl_b32 s53, s53, 8
            s_and_b32 s52, s52, 7
            s_add_u32 s52, s52, s53
            s_mul_i32 s53, s{S_TA}, {A.BX//32*8}
            s_add_u32 s52, s52, s53
            s_mul_i32 s53, s{S_GA}, {WA//2*8}
            s_add_u32 s52, s52, s53
            s_lshl_b32 s52, s52, 10
            s_add_u32 s52, s52, {XR_OFF}""")
            for p in range(WA//2):
                for y in range(WB):
                    r = t + 4*(n % 8); n += 1
                    if y == 4: a("s_add_u32 s53, s52, 4096")
                    a(pack(r, p, y))
                    a(f"buffer_store_dwordx4 v[{r}:{r+3}], v5, {W}, s{52 if y < 4 else 53} offen offset:{(y%4)*1024} {sc}")
                a("s_add_u32 s52, s52, 8192")
        elif g.epi == 'w2':
            for y in range(WB):
                for p in range(WA//2):
                    r = t + 4*(n % 8); n += 1
                    a(pack(r, p, y))
                    a(f"buffer_store_dwordx4 v[{r}:{r+3}], v{12+y}, {W}, s{60+p} offen {sc}")
        else:
            O = f"s[{SRD_M}:{SRD_M+3}]"
            a(f"""v_mul_u32_u24 v5, {F*2}, v3
            v_lshl_add_u32 v6, v4, 3, v5
            v_lshl_add_u32 v5, v4, 4, v5
            s_mul_i32 s52, s{S_TB}, {B.BX}
            s_mul_i32 s53, s{S_GB}, {WB*16}
            s_add_u32 s52, s52, s53
            s_mul_i32 s52, s52, {F*2}
            s_mul_i32 s53, s{S_TA}, {A.BX*2}
            s_add_u32 s52, s52, s53
            s_mul_i32 s53, s{S_GA}, {WA*32}
            s_add_u32 s52, s52, s53""")
            of = C.dbg.get('outflag', '')
            for y in range(WB):
                for p in range(3):
                    r = t + 4*(n % 8); n += 1
                    a(pack(r, p, y))
                    a(f"buffer_store_dwordx4 v[{r}:{r+3}], v5, {O}, s52 offen offset:{64*p} {of}")
                r = t + 4*(n % 8); n += 1
                a(f"""v_cvt_pk_bf16_f32 v{r}, v{Cc(6,y,0)}, v{Cc(6,y,1)}
                v_cvt_pk_bf16_f32 v{r+1}, v{Cc(6,y,2)}, v{Cc(6,y,3)}
                buffer_store_dwordx2 v[{r}:{r+1}], v6, {O}, s52 offen offset:192 {of}""")
                a(f"s_add_u32 s52, s52, {16*F*2}")
    def w2_pre(g, a):
        a(f"""s_lshl_b32 s52, s{S_TB}, 7
        s_lshl_b32 s53, s{S_GB}, 6
        s_add_u32 s52, s52, s53
        v_add_u32 v5, s52, v3
        s_lshl_b32 s52, s{S_TA}, 2
        s_lshl_b32 s53, s{S_GA}, 1
        s_add_u32 s52, s52, s53
        s_mul_i32 s60, s52, {14*1024}
        s_add_u32 s60, s60, {W2_OFF}
        s_add_u32 s61, s60, {14*1024}
        s_mov_b32 s53, 9363""")
        for y in range(4):
            a(f"""v_add_u32 v6, {16*y}, v5
            v_mul_u32_u24 v7, s53, v6
            v_lshrrev_b32 v7, 20, v7
            v_mul_u32_u24 v8, 112, v7
            v_sub_u32 v6, v6, v8
            v_lshrrev_b32 v8, 1, v7
            v_mul_u32_u24 v8, {32*14}, v8
            v_and_b32 v7, 1, v7
            v_mad_u32_u24 v8, v7, 7, v8
            v_lshrrev_b32 v7, 5, v6
            v_lshlrev_b32 v7, 1, v7
            v_bfe_u32 v9, v6, 2, 1
            v_add_u32 v7, v7, v9
            v_bfe_u32 v9, v6, 3, 2
            v_and_b32 v10, 3, v6
            v_lshl_add_u32 v9, v9, 2, v10
            v_cmp_gt_u32 vcc, 96, v6
            v_subrev_u32 v10, 96, v6
            s_nop 0
            v_cndmask_b32 v7, 6, v7, vcc
            v_cndmask_b32 v9, v10, v9, vcc
            v_add_u32 v8, v8, v7
            v_lshlrev_b32 v8, 10, v8
            v_lshl_add_u32 v9, v4, 4, v9
            v_lshl_add_u32 v{12+y}, v9, 4, v8""")

def p_loads(a):
    srd(a, SRD_M, P_QW, D*F*4)
    a(f"""v_lshrrev_b32 v5, 3, v2
    v_and_b32 v6, 7, v2
    v_mul_u32_u24 v32, {F*4}, v5
    v_lshl_add_u32 v32, v6, 5, v32
    v_lshlrev_b32 v33, 4, v6
    s_and_b32 s52, s{S_WAVE}, 1
    s_lshl_b32 s53, s{S_TB}, 1
    s_add_u32 s68, s52, s53               ; kstep
    s_lshr_b32 s69, s{S_WAVE}, 1
    s_lshl_b32 s52, s{S_TA}, 4
    s_add_u32 s52, s52, s69
    s_mul_i32 s52, s52, {8*F*4}
    s_lshl_b32 s53, s68, 8
    s_add_u32 s52, s52, s53""")
    for it in range(4):
        a(f"buffer_load_dwordx4 v[{64+8*it}:{67+8*it}], v32, s[{SRD_M}:{SRD_M+3}], s52 offen nt")
        a(f"buffer_load_dwordx4 v[{68+8*it}:{71+8*it}], v32, s[{SRD_M}:{SRD_M+3}], s52 offen offset:16 nt")
        if it == 0:
            a(f"""s_mul_i32 s70, s{S_TA}, {F*2}
            s_lshl_b32 s53, s68, 7
            s_add_u32 s70, s70, s53
            global_load_dwordx4 v[40:43], v33, s[{P_SC}:{P_SC+1}]""".replace("global_load_dwordx4 v[40:43], v33, s[8:9]", f"v_add_u32 v33, s70, v33\nglobal_load_dwordx4 v[40:43], v33, s[{P_SC}:{P_SC+1}]\nglobal_load_dwordx4 v[44:47], v33, s[{P_Z}:{P_Z+1}]"))
        if it < 3: a(f"s_add_u32 s52, s52, {32*F*4}")

def p_compute(a, younger):
    sc = "sc1" if C.fused else ""
    a(f"""v_lshrrev_b32 v5, 3, v2
    v_lshlrev_b32 v34, 4, v5
    v_and_b32 v6, 3, v2
    v_lshl_add_u32 v34, v6, 8, v34
    v_bfe_u32 v6, v2, 2, 1
    v_lshl_add_u32 v34, v6, 13, v34
    s_mul_i32 s52, s{S_TA}, 56
    s_add_u32 s52, s52, s68
    s_lshl_b32 s52, s52, 14
    s_lshr_b32 s53, s69, 1
    s_lshl_b32 s53, s53, 10
    s_add_u32 s52, s52, s53
    s_and_b32 s53, s69, 1
    s_lshl_b32 s53, s53, 7
    s_add_u32 s52, s52, s53
    s_add_u32 s52, s52, {WQ_OFF}
    s_waitcnt vmcnt({6+younger})""")
    for j in range(4):
        a(f"v_lshlrev_b32 v{48+2*j}, 16, v{40+j}")
        a(f"v_and_b32 v{49+2*j}, 0xffff0000, v{40+j}")
        a(f"v_lshlrev_b32 v{56+2*j}, 16, v{44+j}")
        a(f"v_and_b32 v{57+2*j}, 0xffff0000, v{44+j}")
    for it in range(4):
        if it: a(f"s_waitcnt vmcnt({6-2*it+younger+it})")
        b = 64+8*it
        for j in range(8): a(f"v_cvt_f32_i32 v{b+j}, v{b+j}")
        for j in range(4): a(f"v_cvt_pk_bf16_f32 v{36+j}, v{b+2*j}, v{b+2*j+1}")
        for j in range(4):
            a(f"v_lshlrev_b32 v{b+2*j}, 16, v{36+j}")
            a(f"v_and_b32 v{b+2*j+1}, 0xffff0000, v{36+j}")
        for j in range(8): a(f"v_sub_f32 v{b+j}, v{b+j}, v{56+j}")
        for j in range(4): a(f"v_cvt_pk_bf16_f32 v{36+j}, v{b+2*j}, v{b+2*j+1}")
        for j in range(4):
            a(f"v_lshlrev_b32 v{b+2*j}, 16, v{36+j}")
            a(f"v_and_b32 v{b+2*j+1}, 0xffff0000, v{36+j}")
        for j in range(8): a(f"v_mul_f32 v{b+j}, v{b+j}, v{48+j}")
        for j in range(4): a(f"v_cvt_pk_bf16_f32 v{96+4*it+j}, v{b+2*j}, v{b+2*j+1}")
        a(f"buffer_store_dwordx4 v[{96+4*it}:{99+4*it}], v34, s[{SRD_WS}:{SRD_WS+3}], s52 offen offset:{(it&1)*2048} {sc}")
        if it == 1: a("s_add_u32 s52, s52, 4096")

def get_nonce(a, lbl):
    a(f"""v_mov_b32 v24, 0
    s_mov_b32 s71, 0
    L_nonce{lbl}:
    global_load_dword v25, v24, s[{P_DBG}:{P_DBG+1}] sc1
    s_add_u32 s71, s71, 1
    s_waitcnt vmcnt(0)
    v_readfirstlane_b32 s{S_NONCE}, v25
    s_cmp_gt_u32 s71, {SPIN_MAX}
    s_cbranch_scc1 L_nonce{lbl}_ok
    s_cmp_eq_u32 s{S_NONCE}, 0
    s_cbranch_scc1 L_nonce{lbl}
    L_nonce{lbl}_ok:""")

def put_flag(a, lbl, soff):
    a(f"""s_cmp_eq_u32 s{S_LW}, 0
    s_cbranch_scc0 L_pf{lbl}
    v_mov_b32 v24, 0
    v_mov_b32 v25, s{S_NONCE}
    s_mov_b64 exec, 1
    buffer_store_dword v25, v24, s[{SRD_WS}:{SRD_WS+3}], s{soff} offen sc1
    s_mov_b64 exec, -1
    L_pf{lbl}:""")

def poll(a, lbl, vaddr):
    a(f"""s_mov_b32 s71, 0
    L_poll{lbl}:
    buffer_load_dword v25, v{vaddr}, s[{SRD_WS}:{SRD_WS+3}], 0 offen sc1
    s_add_u32 s71, s71, 1
    s_waitcnt vmcnt(0)
    v_cmp_ne_u32 vcc, s{S_NONCE}, v25
    s_cbranch_vccz L_poll{lbl}_ok
    s_sleep 2
    s_cmp_lt_u32 s71, {SPIN_MAX}
    s_cbranch_scc1 L_poll{lbl}
    L_poll{lbl}_ok:""")

MAP_A2 = f"""s_mul_i32 s52, s{S_XCD}, 28
    s_add_u32 s52, s52, s{S_IDX}
    s_and_b32 s{S_TA}, s52, 7
    s_lshr_b32 s{S_TB}, s52, 3
    s_lshl_b32 s{S_RES}, s{S_TB}, 1
    s_add_u32 s{S_RES}, s{S_RES}, s{S_TA}
    s_and_b32 s{S_RES}, s{S_RES}, 7"""
MAP_A1 = f"""s_sub_u32 s{S_RES}, s{S_IDX}, 28
    s_lshl_b32 s{S_TA}, s{S_RES}, 1
    s_mov_b32 s{S_TB}, s{S_XCD}"""
MAP_B = f"""s_and_b32 s{S_TA}, s{S_XCD}, 3
    s_lshl_b32 s{S_TA}, s{S_TA}, 2
    s_and_b32 s52, s{S_IDX}, 3
    s_add_u32 s{S_TA}, s{S_TA}, s52
    s_lshr_b32 s{S_TB}, s{S_XCD}, 2
    s_lshl_b32 s{S_TB}, s{S_TB}, 3
    s_lshr_b32 s52, s{S_IDX}, 2
    s_add_u32 s{S_TB}, s{S_TB}, s52
    s_add_u32 s{S_RES}, s{S_TA}, s{S_TB}
    s_and_b32 s{S_RES}, s{S_RES}, 3"""

def kernel(a, name, phases, kid):
    fl = "sc1" if C.fused else ""
    g2 = Gemm(name+"a2", Op('F', 128, 4, P_WS, WS_SIZE, wsoff=WQ_OFF, flags=fl), Op('T', 128, 4, P_V, F*F*2, pitch=F*2), 56, 4, 1, 8, 'w2')
    g1 = Gemm(name+"a1", Op('T', 128, 4, P_U, D*D*2, pitch=D*2, tstride=256), Op('R', 256, 8, P_X, S*D*2, pitch=D*2), 16, 3, 2, 4, 'xr')
    gb = Gemm(name+"b", Op('F', 224, 7, P_WS, WS_SIZE, wsoff=W2_OFF, flags=fl), Op('F', 128, 4, P_WS, WS_SIZE, wsoff=XR_OFF, flags=fl), 16, 3, 1, C.dbg.get('bn', 4), 'out')
    P, A, B = 'P' in phases, 'A' in phases, 'B' in phases
    used = ([g2, g1] if A else []) + ([gb] if B else [])
    lds = max([g.lds for g in used] + [0])
    nv = max([g.nv for g in used] + [112])
    N = name
    a.kernel(name, 256, 512, lds, nv)
    a(f"""s_cmp_ge_u32 s2, 256
    s_cbranch_scc1 L_{N}_end
    s_load_dwordx16 s[4:19], s[0:1], 0
    s_load_dwordx2 s[20:21], s[0:1], 64""")
    stamp(a, 0)
    if P and A: a("s_memrealtime s[22:23]")
    a(f"""v_lshrrev_b32 v1, 6, v0
    v_and_b32 v2, 63, v0
    s_and_b32 s{S_XCD}, s2, 7
    v_readfirstlane_b32 s{S_WAVE}, v1
    s_lshr_b32 s{S_IDX}, s2, 3
    v_and_b32 v3, 15, v2
    v_lshrrev_b32 v4, 4, v2
    s_and_b32 s{S_GA}, s{S_WAVE}, 1
    s_lshr_b32 s{S_GB}, s{S_WAVE}, 1
    s_sub_u32 s{S_LW}, s{S_WAVE}, 4
    s_waitcnt lgkmcnt(0)""")
    srd(a, SRD_WS, P_WS, WS_SIZE)
    if P and A:
        a(f"""s_cmp_eq_u32 s2, 0
        s_cbranch_scc0 L_{N}_nn
        s_cmp_eq_u32 s{S_WAVE}, 0
        s_cbranch_scc0 L_{N}_nn
        s_or_b32 s22, s22, 1
        v_mov_b32 v24, 0
        v_mov_b32 v25, s22
        s_mov_b64 exec, 1
        global_store_dword v24, v25, s[{P_DBG}:{P_DBG+1}] sc1
        s_mov_b64 exec, -1
        L_{N}_nn:""")
    if P or A:
        a(f"""s_cmp_ge_u32 s{S_IDX}, 28
        s_cbranch_scc1 L_{N}_A1""")
        a(MAP_A2)
        if P: p_loads(a)
        if not A:
            p_compute(a, 0)
            stamp_store(a, kid, N+"p", 2)
            a.label(f"L_{N}_A1")
            a("s_endpgm")
    if A:
        a(f"""s_cmp_lt_u32 s{S_WAVE}, 4
        s_cbranch_scc1 L_{N}_A2c
        s_setprio 3""")
        g2.ld_init(a)
        if P:
            for e in range(g2.LA): g2.issue(a, (g2.B,))
            p_compute(a, g2.LA*g2.B.q)
            get_nonce(a, "a2")
            a(f"""s_lshl_b32 s52, s{S_TA}, 7
            s_add_u32 s52, s52, {PF}
            v_min_u32 v26, 27, v2
            v_lshl_add_u32 v26, v26, 2, s52
            s_lshl_b32 s53, s{S_TB}, 2
            s_add_u32 s70, s52, s53
            s_barrier""")
            put_flag(a, "p", 70)
            poll(a, "p", 26)
            g2.ld_main(a, pre=g2.B)
        else:
            g2.ld_main(a)
        if B:
            a(f"""s_lshl_b32 s70, s{S_TB}, 7
            s_lshl_b32 s52, s{S_TA}, 2
            s_add_u32 s70, s70, s52
            s_add_u32 s70, s70, {AF}
            s_branch L_{N}_Bl""")
        else: a("s_endpgm")
        a.label(f"L_{N}_A2c")
        if P:
            p_compute(a, 0)
            a("s_waitcnt vmcnt(0)\ns_barrier")
            stamp(a, 1)
        g2.w2_pre(a)
        g2.co_init(a)
        g2.co_main(a, 2, 3)
        if B: a(f"s_branch L_{N}_Bc")
        else:
            stamp_store(a, kid, N+"a2", 5)
            a("s_endpgm")
        a.label(f"L_{N}_A1")
        a(MAP_A1)
        a(f"""s_cmp_lt_u32 s{S_WAVE}, 4
        s_cbranch_scc1 L_{N}_A1c
        s_setprio 3""")
        g1.ld_init(a)
        g1.ld_main(a)
        if B:
            get_nonce(a, "a1")
            a(f"""s_lshl_b32 s70, s{S_XCD}, 7
            s_lshl_b32 s52, s{S_RES}, 2
            s_add_u32 s70, s70, s52
            s_add_u32 s70, s70, {XF}
            s_branch L_{N}_Bl""")
        else: a("s_endpgm")
        a.label(f"L_{N}_A1c")
        stamp(a, 1)
        g1.co_init(a)
        g1.co_main(a, 2, 3)
        if B: a(f"s_branch L_{N}_Bc")
        else:
            stamp_store(a, kid, N+"a1", 5)
            a("s_endpgm")
    if B:
        if not A:
            a(f"""s_cmp_lt_u32 s{S_WAVE}, 4
            s_cbranch_scc1 L_{N}_Bc
            s_setprio 3""")
        a.label(f"L_{N}_Bl")
        a(MAP_B)
        gb.ld_init(a)
        if A:
            a(f"""s_lshr_b32 s52, s{S_TB}, 1
            s_lshl_b32 s52, s52, 7
            s_add_u32 s52, s52, {XF}
            v_and_b32 v26, 3, v2
            v_lshl_add_u32 v26, v26, 2, s52
            s_mul_i32 s52, s{S_TA}, 224
            s_add_u32 s53, s52, 223
            s_lshr_b32 s52, s52, 7
            s_lshr_b32 s53, s53, 7
            v_lshrrev_b32 v27, 3, v2
            v_add_u32 v27, s52, v27
            v_min_u32 v27, s53, v27
            v_lshlrev_b32 v27, 7, v27
            v_and_b32 v28, 7, v2
            v_lshl_add_u32 v27, v28, 2, v27
            v_add_u32 v27, {AF}, v27
            s_barrier""")
            put_flag(a, "a", 70)
            poll(a, "x", 26)
            for e in range(gb.LA): gb.issue(a, (gb.B,))
            poll(a, "a", 27)
            gb.ld_main(a, pre=gb.B)
        else:
            gb.ld_main(a)
        a("s_endpgm")
        a.label(f"L_{N}_Bc")
        if A:
            a("s_waitcnt vmcnt(0)\ns_barrier")
            stamp(a, 4)
        a(MAP_B)
        srd(a, SRD_M, P_OUT, S*F*2)
        gb.co_init(a)
        gb.co_main(a, 5, 6)
        stamp_store(a, kid, N+"b", 8)
    a.label(f"L_{N}_end")
    a("s_endpgm")

def build(mode, TL=False, **dbg):
    C.TL = TL; C.dbg = dbg
    a = Asm()
    if mode == 'fused':
        C.fused = True
        kernel(a, "quip_kernel", "PAB", 0)
    else:
        C.fused = False
        kernel(a, "p_kernel", "P", 0); kernel(a, "a_kernel", "A", 1); kernel(a, "b_kernel", "B", 2)
    return a.text(HEADER)

if __name__ == "__main__":
    open("v4_3l.s", "w").write(build('3l'))
    open("v4_3l_tl.s", "w").write(build('3l', TL=True))
    open("v4_f.s", "w").write(build('fused'))
    open("v4_f_tl.s", "w").write(build('fused', TL=True))
```

```python
import sys
from asmlib import Asm

D, F, S = 1024, 3584, 2048
WQ_OFF, XR_OFF, W2_OFF, FLG = 0, 0x800000, 0xC00000, 0x1500000
PF, AF, XF = FLG, FLG + 0x1000, FLG + 0x2000
WS_SIZE = 0x10000000
HEADER = open('standalone__weight_only_int_quip__prompt.s.ref').read().split("; Override")[0]
P_X, P_QW, P_SC, P_Z, P_U, P_V, P_OUT, P_DBG, P_WS = 4, 6, 8, 10, 12, 14, 16, 18, 20
SRD_A, SRD_B, SRD_WS, SRD_M = 24, 28, 32, 36
S_TA, S_TB, S_RES, S_WAVE, S_GA, S_GB = 40, 41, 42, 43, 44, 45
S_NONCE, S_XCD, S_IDX, S_LW = 65, 66, 67, 59
SPIN_MAX = 1 << 16

class Cfg:
    TL = False
    fused = True
    dbg = {}
C = Cfg()

def srd(a, d, lo, size):
    a(f"""s_mov_b32 s{d}, s{lo}
    s_mov_b32 s{d+1}, s{lo+1}
    s_mov_b32 s{d+2}, {size}
    s_mov_b32 s{d+3}, 0x20000""")

def stamp(a, i):
    if C.TL: a(f"s_memrealtime s[{76+2*i}:{77+2*i}]")
def stamp_store(a, kid, lbl, n):
    if C.TL:
        a("s_waitcnt vmcnt(0)")
        stamp(a, n-1)
        a("s_waitcnt lgkmcnt(0)")
        for i in range(8): a(f"v_mov_b32 v{8+i}, s{76+2*min(i,n-1)}")
        a(f"""s_lshl_b32 s72, s2, 5
        s_add_u32 s72, s72, {0x8000000 + kid*0x4000}
        v_mov_b32 v7, 0
        v_cmp_eq_u32 vcc, 0, v0
        s_and_saveexec_b64 s[74:75], vcc
        s_cbranch_execz L_tl{lbl}
        buffer_store_dwordx4 v[8:11], v7, s[{SRD_WS}:{SRD_WS+3}], s72 offen
        buffer_store_dwordx4 v[12:15], v7, s[{SRD_WS}:{SRD_WS+3}], s72 offen offset:16
        """)
        if C.dbg.get('dbgtl'):
            for i in range(8):
                a(f"global_atomic_umax v7, v{8+i}, s[{P_DBG}:{P_DBG+1}] offset:{4+4*i}")
            for k, i in enumerate((0, 2, 3, 5, 6, 7)):
                a(f"v_not_b32 v{8+i}, v{8+i}")
                a(f"global_atomic_umax v7, v{8+i}, s[{P_DBG}:{P_DBG+1}] offset:{36+4*k}")
        a(f"""
        L_tl{lbl}:""")

class Op:
    def __init__(s, kind, BX, WX, ptr, size, pitch=0, wsoff=0, flags="", tstride=0):
        s.kind, s.BX, s.WX, s.ptr, s.size, s.pitch, s.wsoff, s.flags, s.tstride = kind, BX, WX, ptr, size, pitch, wsoff, flags, tstride
        s.bytes = BX*128
        s.ndma = BX//8
        s.q = s.ndma//4

class Gemm:
    def __init__(g, name, A, B, KS, NS, NT, n, epi):
        g.name, g.A, g.B, g.KS, g.NS, g.NT, g.n, g.epi = name, A, B, KS, NS, NT, n, epi
        g.LA = NS-1
        A.off, B.off = 0, NS*A.bytes
        g.lds = NS*(A.bytes+B.bytes)
        A.srd, B.srd = SRD_A, SRD_B
        A.st, B.st = S_TA, S_TB
        A.sb, B.sb = 46, 47
        A.so, B.so = 48, 49
        A.nx, B.nx = 62, 63
        A.sm, B.sm = 55, 56
        A.vd, B.vd = 16, 20
        A.sg, B.sg = S_GA, S_GB
        for o in (A, B):
            if o.kind == 'F': o.kstride, o.gstride = o.bytes, 4096
            elif o.kind == 'T': o.kstride, o.gstride = 64*o.pitch, 16*o.pitch
            else: o.kstride, o.gstride = 128, 32*o.pitch
        vr = [16]
        def valloc(k, al=1):
            while vr[0] % al: vr[0] += 1
            r = vr[0]; vr[0] += k; return r
        for o in (A, B):
            o.nadr = {'F': 1, 'T': o.WX, 'R': 2}[o.kind]
            o.spr = max(1, 65536 // o.bytes)
            o.nrange = (NS + o.spr - 1)//o.spr
            o.vrd = valloc(o.nadr*o.nrange)
        g.fr = [[valloc(4*A.WX, 4), valloc(4*B.WX, 4)] for _ in range(2)]
        g.acc = valloc(4*A.WX*B.WX, 4)
        g.nv = vr[0]

    def ld_init(g, a):
        A, B = g.A, g.B
        srd(a, A.srd, A.ptr, A.size); srd(a, B.srd, B.ptr, B.size)
        for o in (A, B):
            if o.kind == 'F':
                a(f"""v_lshlrev_b32 v{o.vd}, 4, v2
                s_mul_i32 s{o.sb}, s{o.st}, {g.KS*o.bytes}
                s_mul_i32 s52, s{S_LW}, {o.q*1024}
                s_add_u32 s52, s52, {o.wsoff}
                s_add_u32 s{o.sb}, s{o.sb}, s52""")
            elif o.kind == 'T':
                assert o.BX == 128
                a(f"""v_mul_u32_u24 v5, {o.pitch}, v4
                v_lshlrev_b32 v6, 1, v4
                v_xor_b32 v6, v6, v3
                v_lshl_add_u32 v7, v6, 4, v5
                v_xor_b32 v6, 8, v6
                v_lshl_add_u32 v8, v6, 4, v5""")
                for ii in range(4):
                    a(f"v_add_u32 v{o.vd+ii}, {ii*(4*o.pitch-1024)}, v{7 if ii < 2 else 8}")
                a(f"""s_lshl_b32 s{o.sb}, s{o.st}, 8
                s_mul_i32 s52, s{S_LW}, {o.q//4*o.gstride}
                s_add_u32 s{o.sb}, s{o.sb}, s52""")
            else:
                a(f"""v_lshrrev_b32 v5, 3, v2
                v_and_b32 v6, 7, v2
                v_lshrrev_b32 v7, 1, v5
                v_xor_b32 v6, v6, v7
                v_mul_u32_u24 v5, {o.pitch}, v5
                v_lshl_add_u32 v7, v6, 4, v5
                v_xor_b32 v6, 4, v6
                v_lshl_add_u32 v8, v6, 4, v5""")
                for ii in range(4):
                    a(f"v_add_u32 v{o.vd+ii}, {ii*(8*o.pitch-1024)}, v{7 if ii % 2 == 0 else 8}")
                a(f"""s_mul_i32 s{o.sb}, s{o.st}, {o.BX*o.pitch}
                s_mul_i32 s52, s{S_LW}, {o.q//4*o.gstride}
                s_add_u32 s{o.sb}, s{o.sb}, s52""")
        a(f"""s_mul_i32 s50, s{S_LW}, {A.q*1024}
        s_mul_i32 s51, s{S_LW}, {B.q*1024}
        s_add_u32 s51, s51, {B.off}
        s_add_u32 s57, s50, {g.NS*A.bytes}
        s_add_u32 s58, s{S_RES}, {g.KS-g.n}""")
        g.ld_rewind(a)
    def ld_rewind(g, a):
        a(f"""s_mov_b32 s54, 0
        s_mov_b32 s55, s50
        s_mov_b32 s56, s51""")
        a(g.setup())
    def setup(g):
        A, B, n = g.A, g.B, g.n
        t = ""
        if g.NT > 1: t += f"s_and_b32 s60, s54, {g.KS-1}\n"
        j = "s60" if g.NT > 1 else "s54"
        t += f"""s_sub_u32 s52, {j}, 1
        s_and_b32 s53, s52, {n-1}
        s_cmp_eq_u32 s53, s{S_RES}
        s_cselect_b32 s53, {n}, 0
        s_cmp_ge_u32 s52, s58
        s_cselect_b32 s53, 1, s53
        s_add_u32 s52, s52, s53
        s_cmp_eq_u32 {j}, 0
        s_cselect_b32 s52, s{S_RES}, s52
        s_mul_i32 s{A.nx}, s52, {A.kstride}
        s_add_u32 s{A.nx}, s{A.nx}, s{A.sb}
        s_mul_i32 s{B.nx}, s52, {B.kstride}
        s_add_u32 s{B.nx}, s{B.nx}, s{B.sb}"""
        if g.NT > 1:
            t += f"\ns_lshr_b32 s53, s54, {g.KS.bit_length()-1}"
            for o in (A, B):
                if o.tstride: t += f"\ns_mul_i32 s52, s53, {o.tstride}\ns_add_u32 s{o.nx}, s{o.nx}, s52"
        return t
    def issue(g, a, ops=None):
        A, B = g.A, g.B
        ops = ops or (A, B)
        cnt = 0
        adv = f"""s_add_u32 s55, s55, {A.bytes}
        s_add_u32 s56, s56, {B.bytes}
        s_cmp_eq_u32 s55, s57
        s_cselect_b32 s55, s50, s55
        s_cselect_b32 s56, s51, s56
        s_cmp_lt_u32 s54, {g.KS*g.NT}
        s_cselect_b32 s64, 1, 0"""
        for k, o in enumerate(ops):
            for i in range(o.q):
                if i == 0:
                    a(f"s_mov_b32 m0, s{o.sm}")
                    if k == 0: a(f"s_mov_b32 s{A.so}, s{A.nx}\ns_mov_b32 s{B.so}, s{B.nx}")
                    else: a("s_nop 0")
                elif i % 4 == 0: a(f"s_add_u32 m0, m0, 4096\ns_add_u32 s{o.so}, s{o.so}, {o.gstride}")
                v = o.vd if o.kind == 'F' else o.vd + i % 4
                a(f"buffer_load_dwordx4 v{v}, s[{o.srd}:{o.srd+3}], s{o.so} offen offset:{(i%4)*1024} {o.flags} lds")
                if k == 0 and i == 1:
                    a("s_add_u32 s54, s54, 1")
                    a(g.setup())
                if k == len(ops)-1 and i == (2 if k == 0 else 0): a(adv)
    def ld_main(g, a, pre=None):
        A, B, LA, L = g.A, g.B, g.LA, g.name
        pw = A.q + B.q
        if pre is None:
            for e in range(LA): g.issue(a)
            a(f"s_waitcnt vmcnt({(LA-1)*pw})\ns_barrier")
        else:
            o = A if pre is B else B
            g.ld_rewind(a)
            for e in range(LA): g.issue(a, (o,))
            a(f"s_waitcnt vmcnt({(LA-1)*o.q})\ns_barrier")
            for e in range(LA-2):
                g.issue(a)
                a(f"s_waitcnt vmcnt({(LA-2-e)*o.q + (e+1)*pw})\ns_barrier")
        a.label(f"L_{L}_go")
        g.issue(a)
        a(f"""s_cmp_eq_u32 s64, 1
        s_waitcnt vmcnt({(LA-1)*pw})
        s_barrier
        s_cbranch_scc1 L_{L}_go""")
        for e in range(LA-2, -1, -1):
            a(f"s_waitcnt vmcnt({e*pw})\ns_barrier")
        a("s_barrier")

    def co_init(g, a):
        for o in (g.A, g.B):
            if o.kind == 'F':
                a(f"""s_mul_i32 s52, s{o.sg}, {o.WX*1024}
                s_add_u32 s52, s52, {o.off}
                v_lshl_add_u32 v{o.vrd}, v2, 4, s52""")
            elif o.kind == 'T':
                a(f"""v_lshrrev_b32 v5, 2, v3
                v_lshl_add_u32 v6, v4, 3, v5
                v_lshlrev_b32 v6, 8, v6
                v_and_b32 v7, 3, v2
                v_lshl_add_u32 v6, v7, 3, v6
                v_add_u32 v6, {o.off}, v6
                v_and_b32 v7, 1, v4
                v_lshl_or_b32 v5, v7, 2, v5
                s_mul_i32 s52, s{o.sg}, {o.WX}""")
                for b in range(o.WX):
                    a(f"""s_add_u32 s53, s52, {b}
                    v_xor_b32 v7, s53, v5
                    v_lshl_add_u32 v{o.vrd+b}, v7, 5, v6""")
            else:
                a(f"""s_mul_i32 s52, s{o.sg}, {o.WX*2048}
                s_add_u32 s52, s52, {o.off}
                v_lshl_add_u32 v5, v3, 7, s52
                v_lshrrev_b32 v6, 1, v3
                v_xor_b32 v6, v6, v4
                v_lshl_add_u32 v{o.vrd}, v6, 4, v5
                v_xor_b32 v6, 4, v6
                v_lshl_add_u32 v{o.vrd+1}, v6, 4, v5""")
            for rg in range(1, o.nrange):
                for i in range(o.nadr):
                    a(f"v_add_u32 v{o.vrd+rg*o.nadr+i}, {rg*o.spr*o.bytes}, v{o.vrd+i}")
        g.zero(a)
    def zero(g, a):
        for i in range(4*g.A.WX*g.B.WX): a(f"v_mov_b32 v{g.acc+i}, 0")
    def reads(g, setn, slot, ksub):
        r = []
        for oi, o in enumerate((g.A, g.B)):
            f = g.fr[setn][oi]
            rg = slot // o.spr; so = (slot % o.spr)*o.bytes; vb = o.vrd + rg*o.nadr
            for x in range(o.WX):
                if o.kind == 'F': r.append(f"ds_read_b128 v[{f+4*x}:{f+4*x+3}], v{vb} offset:{so+(ksub*(o.BX//16)+x)*1024}")
                elif o.kind == 'R': r.append(f"ds_read_b128 v[{f+4*x}:{f+4*x+3}], v{vb+ksub} offset:{so+x*2048}")
                else:
                    for t in range(2):
                        r.append(f"ds_read_b64_tr_b16 v[{f+4*x+2*t}:{f+4*x+2*t+1}], v{vb+x} offset:{so+ksub*8192+t*1024}")
        return r
    def mfmas(g, setn):
        WA, WB = g.A.WX, g.B.WX
        m = []
        for x in range(WA):
            for yy in range(WB):
                y = yy if x % 2 == 0 else WB-1-yy
                c = g.acc + 4*(x*WB+y)
                fa, fb = g.fr[setn][0]+4*x, g.fr[setn][1]+4*y
                m.append(f"v_mfma_f32_16x16x32_bf16 v[{c}:{c+3}], v[{fa}:{fa+3}], v[{fb}:{fb+3}], v[{c}:{c+3}]")
        return m
    def co_main(g, a, st_loop=None, st_end=None):
        L, NS = g.name, g.NS
        def inter(ms, fill):
            out = []
            for i, m in enumerate(ms):
                out.append(m)
                if i < len(fill): out += fill[i]
            assert len(fill) <= len(ms)
            return out
        a("s_mov_b32 s57, 0\ns_mov_b32 s58, 0\ns_barrier")
        if st_loop is not None: stamp(a, st_loop)
        for i in g.reads(0, 0, 0): a(i)
        for sl in range(NS):
            a.label(f"L_{L}_c{sl}")
            a("s_waitcnt lgkmcnt(0)")
            fill = [[r] for r in g.reads(1, sl, 1)] + [["s_add_u32 s57, s57, 1", f"s_cmp_lt_u32 s57, {g.KS}"]]
            for i in inter(g.mfmas(0), fill): a(i)
            a("s_waitcnt lgkmcnt(0)\ns_barrier")
            for i in inter(g.mfmas(1), [[r] for r in g.reads(0, (sl+1) % NS, 0)]): a(i)
            if sl < NS-1: a(f"s_cbranch_scc0 L_{L}_done")
            else: a(f"s_cbranch_scc1 L_{L}_c0")
        a.label(f"L_{L}_done")
        a("s_nop 7")
        if st_end is not None: stamp(a, st_end)
        g.epilogue(a)
        if g.NT > 1:
            assert g.NT == 2
            a(f"""s_cmp_eq_u32 s58, 1
            s_cbranch_scc1 L_{L}_fin
            s_mov_b32 s58, 1
            s_mov_b32 s57, 0
            s_add_u32 s{S_TA}, s{S_TA}, 1""")
            g.zero(a)
            a(f"s_branch L_{L}_c{g.KS % NS}")
            a.label(f"L_{L}_fin")
        a("s_waitcnt lgkmcnt(0)")
    def epilogue(g, a):
        A, B, WA, WB = g.A, g.B, g.A.WX, g.B.WX
        t = g.fr[1][0]
        sc = "sc1" if C.fused else ""
        def Cc(x, y, i): return g.acc + 4*(x*WB+y) + i
        def pack(r, p, y):
            return f"""v_cvt_pk_bf16_f32 v{r}, v{Cc(2*p,y,0)}, v{Cc(2*p,y,1)}
                v_cvt_pk_bf16_f32 v{r+1}, v{Cc(2*p,y,2)}, v{Cc(2*p,y,3)}
                v_cvt_pk_bf16_f32 v{r+2}, v{Cc(2*p+1,y,0)}, v{Cc(2*p+1,y,1)}
                v_cvt_pk_bf16_f32 v{r+3}, v{Cc(2*p+1,y,2)}, v{Cc(2*p+1,y,3)}"""
        W = f"s[{SRD_WS}:{SRD_WS+3}]"
        n = 0
        if g.epi == 'xr':
            a(f"""v_lshlrev_b32 v5, 4, v2
            s_mul_i32 s52, s{S_TB}, {B.BX//16}
            s_mul_i32 s53, s{S_GB}, {WB}
            s_add_u32 s52, s52, s53
            s_lshr_b32 s53, s52, 3
            s_lshl_b32 s53, s53, 8
            s_and_b32 s52, s52, 7
            s_add_u32 s52, s52, s53
            s_mul_i32 s53, s{S_TA}, {A.BX//32*8}
            s_add_u32 s52, s52, s53
            s_mul_i32 s53, s{S_GA}, {WA//2*8}
            s_add_u32 s52, s52, s53
            s_lshl_b32 s52, s52, 10
            s_add_u32 s52, s52, {XR_OFF}""")
            for p in range(WA//2):
                for y in range(WB):
                    r = t + 4*(n % 8); n += 1
                    if y == 4: a("s_add_u32 s53, s52, 4096")
                    a(pack(r, p, y))
                    a(f"buffer_store_dwordx4 v[{r}:{r+3}], v5, {W}, s{52 if y < 4 else 53} offen offset:{(y%4)*1024} {sc}")
                a("s_add_u32 s52, s52, 8192")
        elif g.epi == 'w2':
            for y in range(WB):
                for p in range(WA//2):
                    r = t + 4*(n % 8); n += 1
                    a(pack(r, p, y))
                    a(f"buffer_store_dwordx4 v[{r}:{r+3}], v{12+y}, {W}, s{60+p} offen {sc}")
        else:
            O = f"s[{SRD_M}:{SRD_M+3}]"
            a(f"""v_mul_u32_u24 v5, {F*2}, v3
            v_lshl_add_u32 v6, v4, 3, v5
            v_lshl_add_u32 v5, v4, 4, v5
            s_mul_i32 s52, s{S_TB}, {B.BX}
            s_mul_i32 s53, s{S_GB}, {WB*16}
            s_add_u32 s52, s52, s53
            s_mul_i32 s52, s52, {F*2}
            s_mul_i32 s53, s{S_TA}, {A.BX*2}
            s_add_u32 s52, s52, s53
            s_mul_i32 s53, s{S_GA}, {WA*32}
            s_add_u32 s52, s52, s53""")
            of = C.dbg.get('outflag', '')
            for y in range(WB):
                for p in range(3):
                    r = t + 4*(n % 8); n += 1
                    a(pack(r, p, y))
                    a(f"buffer_store_dwordx4 v[{r}:{r+3}], v5, {O}, s52 offen offset:{64*p} {of}")
                r = t + 4*(n % 8); n += 1
                a(f"""v_cvt_pk_bf16_f32 v{r}, v{Cc(6,y,0)}, v{Cc(6,y,1)}
                v_cvt_pk_bf16_f32 v{r+1}, v{Cc(6,y,2)}, v{Cc(6,y,3)}
                buffer_store_dwordx2 v[{r}:{r+1}], v6, {O}, s52 offen offset:192 {of}""")
                a(f"s_add_u32 s52, s52, {16*F*2}")
    def w2_pre(g, a):
        a(f"""s_lshl_b32 s52, s{S_TB}, 7
        s_lshl_b32 s53, s{S_GB}, 6
        s_add_u32 s52, s52, s53
        v_add_u32 v5, s52, v3
        s_lshl_b32 s52, s{S_TA}, 2
        s_lshl_b32 s53, s{S_GA}, 1
        s_add_u32 s52, s52, s53
        s_mul_i32 s60, s52, {14*1024}
        s_add_u32 s60, s60, {W2_OFF}
        s_add_u32 s61, s60, {14*1024}
        s_mov_b32 s53, 9363""")
        for y in range(4):
            a(f"""v_add_u32 v6, {16*y}, v5
            v_mul_u32_u24 v7, s53, v6
            v_lshrrev_b32 v7, 20, v7
            v_mul_u32_u24 v8, 112, v7
            v_sub_u32 v6, v6, v8
            v_lshrrev_b32 v8, 1, v7
            v_mul_u32_u24 v8, {32*14}, v8
            v_and_b32 v7, 1, v7
            v_mad_u32_u24 v8, v7, 7, v8
            v_lshrrev_b32 v7, 5, v6
            v_lshlrev_b32 v7, 1, v7
            v_bfe_u32 v9, v6, 2, 1
            v_add_u32 v7, v7, v9
            v_bfe_u32 v9, v6, 3, 2
            v_and_b32 v10, 3, v6
            v_lshl_add_u32 v9, v9, 2, v10
            v_cmp_gt_u32 vcc, 96, v6
            v_subrev_u32 v10, 96, v6
            s_nop 0
            v_cndmask_b32 v7, 6, v7, vcc
            v_cndmask_b32 v9, v10, v9, vcc
            v_add_u32 v8, v8, v7
            v_lshlrev_b32 v8, 10, v8
            v_lshl_add_u32 v9, v4, 4, v9
            v_lshl_add_u32 v{12+y}, v9, 4, v8""")

def p_loads(a):
    srd(a, SRD_M, P_QW, D*F*4)
    a(f"""v_lshrrev_b32 v5, 3, v2
    v_and_b32 v6, 7, v2
    v_mul_u32_u24 v32, {F*4}, v5
    v_lshl_add_u32 v32, v6, 5, v32
    v_lshlrev_b32 v33, 4, v6
    s_and_b32 s52, s{S_WAVE}, 1
    s_lshl_b32 s53, s{S_TB}, 1
    s_add_u32 s68, s52, s53               ; kstep
    s_lshr_b32 s69, s{S_WAVE}, 1
    s_lshl_b32 s52, s{S_TA}, 4
    s_add_u32 s52, s52, s69
    s_mul_i32 s52, s52, {8*F*4}
    s_lshl_b32 s53, s68, 8
    s_add_u32 s52, s52, s53""")
    for it in range(4):
        a(f"buffer_load_dwordx4 v[{64+8*it}:{67+8*it}], v32, s[{SRD_M}:{SRD_M+3}], s52 offen nt")
        a(f"buffer_load_dwordx4 v[{68+8*it}:{71+8*it}], v32, s[{SRD_M}:{SRD_M+3}], s52 offen offset:16 nt")
        if it == 0:
            a(f"""s_mul_i32 s70, s{S_TA}, {F*2}
            s_lshl_b32 s53, s68, 7
            s_add_u32 s70, s70, s53
            global_load_dwordx4 v[40:43], v33, s[{P_SC}:{P_SC+1}]""".replace("global_load_dwordx4 v[40:43], v33, s[8:9]", f"v_add_u32 v33, s70, v33\nglobal_load_dwordx4 v[40:43], v33, s[{P_SC}:{P_SC+1}]\nglobal_load_dwordx4 v[44:47], v33, s[{P_Z}:{P_Z+1}]"))
        if it < 3: a(f"s_add_u32 s52, s52, {32*F*4}")

def p_compute(a, younger):
    sc = "sc1" if C.fused else ""
    a(f"""v_lshrrev_b32 v5, 3, v2
    v_lshlrev_b32 v34, 4, v5
    v_and_b32 v6, 3, v2
    v_lshl_add_u32 v34, v6, 8, v34
    v_bfe_u32 v6, v2, 2, 1
    v_lshl_add_u32 v34, v6, 13, v34
    s_mul_i32 s52, s{S_TA}, 56
    s_add_u32 s52, s52, s68
    s_lshl_b32 s52, s52, 14
    s_lshr_b32 s53, s69, 1
    s_lshl_b32 s53, s53, 10
    s_add_u32 s52, s52, s53
    s_and_b32 s53, s69, 1
    s_lshl_b32 s53, s53, 7
    s_add_u32 s52, s52, s53
    s_add_u32 s52, s52, {WQ_OFF}
    s_waitcnt vmcnt({6+younger})""")
    for j in range(4):
        a(f"v_lshlrev_b32 v{48+2*j}, 16, v{40+j}")
        a(f"v_and_b32 v{49+2*j}, 0xffff0000, v{40+j}")
        a(f"v_lshlrev_b32 v{56+2*j}, 16, v{44+j}")
        a(f"v_and_b32 v{57+2*j}, 0xffff0000, v{44+j}")
    for it in range(4):
        if it: a(f"s_waitcnt vmcnt({6-2*it+younger+it})")
        b = 64+8*it
        for j in range(8): a(f"v_cvt_f32_i32 v{b+j}, v{b+j}")
        for j in range(4): a(f"v_cvt_pk_bf16_f32 v{36+j}, v{b+2*j}, v{b+2*j+1}")
        for j in range(4):
            a(f"v_lshlrev_b32 v{b+2*j}, 16, v{36+j}")
            a(f"v_and_b32 v{b+2*j+1}, 0xffff0000, v{36+j}")
        for j in range(8): a(f"v_sub_f32 v{b+j}, v{b+j}, v{56+j}")
        for j in range(4): a(f"v_cvt_pk_bf16_f32 v{36+j}, v{b+2*j}, v{b+2*j+1}")
        for j in range(4):
            a(f"v_lshlrev_b32 v{b+2*j}, 16, v{36+j}")
            a(f"v_and_b32 v{b+2*j+1}, 0xffff0000, v{36+j}")
        for j in range(8): a(f"v_mul_f32 v{b+j}, v{b+j}, v{48+j}")
        for j in range(4): a(f"v_cvt_pk_bf16_f32 v{96+4*it+j}, v{b+2*j}, v{b+2*j+1}")
        a(f"buffer_store_dwordx4 v[{96+4*it}:{99+4*it}], v34, s[{SRD_WS}:{SRD_WS+3}], s52 offen offset:{(it&1)*2048} {sc}")
        if it == 1: a("s_add_u32 s52, s52, 4096")

def get_nonce(a, lbl):
    a(f"""v_mov_b32 v24, 0
    s_mov_b32 s71, 0
    L_nonce{lbl}:
    global_load_dword v25, v24, s[{P_DBG}:{P_DBG+1}] sc1
    s_add_u32 s71, s71, 1
    s_waitcnt vmcnt(0)
    v_readfirstlane_b32 s{S_NONCE}, v25
    s_cmp_gt_u32 s71, {SPIN_MAX}
    s_cbranch_scc1 L_nonce{lbl}_ok
    s_cmp_eq_u32 s{S_NONCE}, 0
    s_cbranch_scc1 L_nonce{lbl}
    L_nonce{lbl}_ok:""")

def put_flag(a, lbl, soff):
    a(f"""s_cmp_eq_u32 s{S_LW}, 0
    s_cbranch_scc0 L_pf{lbl}
    v_mov_b32 v24, 0
    v_mov_b32 v25, s{S_NONCE}
    s_mov_b64 exec, 1
    buffer_store_dword v25, v24, s[{SRD_WS}:{SRD_WS+3}], s{soff} offen sc1
    s_mov_b64 exec, -1
    L_pf{lbl}:""")

def poll(a, lbl, vaddr):
    a(f"""s_mov_b32 s71, 0
    L_poll{lbl}:
    buffer_load_dword v25, v{vaddr}, s[{SRD_WS}:{SRD_WS+3}], 0 offen sc1
    s_add_u32 s71, s71, 1
    s_waitcnt vmcnt(0)
    v_cmp_ne_u32 vcc, s{S_NONCE}, v25
    s_cbranch_vccz L_poll{lbl}_ok
    s_sleep 2
    s_cmp_lt_u32 s71, {SPIN_MAX}
    s_cbranch_scc1 L_poll{lbl}
    L_poll{lbl}_ok:""")

MAP_A2 = f"""s_mul_i32 s52, s{S_XCD}, 28
    s_add_u32 s52, s52, s{S_IDX}
    s_and_b32 s{S_TA}, s52, 7
    s_lshr_b32 s{S_TB}, s52, 3
    s_lshl_b32 s{S_RES}, s{S_TB}, 1
    s_add_u32 s{S_RES}, s{S_RES}, s{S_TA}
    s_and_b32 s{S_RES}, s{S_RES}, 7"""
MAP_A1 = f"""s_sub_u32 s{S_RES}, s{S_IDX}, 28
    s_lshl_b32 s{S_TA}, s{S_RES}, 1
    s_mov_b32 s{S_TB}, s{S_XCD}"""
MAP_B = f"""s_and_b32 s{S_TA}, s{S_XCD}, 3
    s_lshl_b32 s{S_TA}, s{S_TA}, 2
    s_and_b32 s52, s{S_IDX}, 3
    s_add_u32 s{S_TA}, s{S_TA}, s52
    s_lshr_b32 s{S_TB}, s{S_XCD}, 2
    s_lshl_b32 s{S_TB}, s{S_TB}, 3
    s_lshr_b32 s52, s{S_IDX}, 2
    s_add_u32 s{S_TB}, s{S_TB}, s52
    s_add_u32 s{S_RES}, s{S_TA}, s{S_TB}
    s_and_b32 s{S_RES}, s{S_RES}, 3"""

def kernel(a, name, phases, kid):
    fl = "sc1" if C.fused else ""
    g2 = Gemm(name+"a2", Op('F', 128, 4, P_WS, WS_SIZE, wsoff=WQ_OFF, flags=fl), Op('T', 128, 4, P_V, F*F*2, pitch=F*2), 56, 4, 1, 8, 'w2')
    g1 = Gemm(name+"a1", Op('T', 128, 4, P_U, D*D*2, pitch=D*2, tstride=256), Op('R', 256, 8, P_X, S*D*2, pitch=D*2), 16, 3, 2, 4, 'xr')
    gb = Gemm(name+"b", Op('F', 224, 7, P_WS, WS_SIZE, wsoff=W2_OFF, flags=fl), Op('F', 128, 4, P_WS, WS_SIZE, wsoff=XR_OFF, flags=fl), 16, 3, 1, C.dbg.get('bn', 4), 'out')
    P, A, B = 'P' in phases, 'A' in phases, 'B' in phases
    used = ([g2, g1] if A else []) + ([gb] if B else [])
    lds = max([g.lds for g in used] + [0])
    nv = max([g.nv for g in used] + [112])
    N = name
    a.kernel(name, 256, 512, lds, nv)
    a(f"""s_cmp_ge_u32 s2, 256
    s_cbranch_scc1 L_{N}_end
    s_load_dwordx16 s[4:19], s[0:1], 0
    s_load_dwordx2 s[20:21], s[0:1], 64""")
    stamp(a, 0)
    if P and A: a("s_memrealtime s[22:23]")
    a(f"""v_lshrrev_b32 v1, 6, v0
    v_and_b32 v2, 63, v0
    s_and_b32 s{S_XCD}, s2, 7
    v_readfirstlane_b32 s{S_WAVE}, v1
    s_lshr_b32 s{S_IDX}, s2, 3
    v_and_b32 v3, 15, v2
    v_lshrrev_b32 v4, 4, v2
    s_and_b32 s{S_GA}, s{S_WAVE}, 1
    s_lshr_b32 s{S_GB}, s{S_WAVE}, 1
    s_sub_u32 s{S_LW}, s{S_WAVE}, 4
    s_waitcnt lgkmcnt(0)""")
    srd(a, SRD_WS, P_WS, WS_SIZE)
    if P and A:
        a(f"""s_cmp_eq_u32 s2, 0
        s_cbranch_scc0 L_{N}_nn
        s_cmp_eq_u32 s{S_WAVE}, 0
        s_cbranch_scc0 L_{N}_nn
        s_or_b32 s22, s22, 1
        v_mov_b32 v24, 0
        v_mov_b32 v25, s22
        s_mov_b64 exec, 1
        global_store_dword v24, v25, s[{P_DBG}:{P_DBG+1}] sc1
        s_mov_b64 exec, -1
        L_{N}_nn:""")
    if P or A:
        a(f"""s_cmp_ge_u32 s{S_IDX}, 28
        s_cbranch_scc1 L_{N}_A1""")
        a(MAP_A2)
        if P: p_loads(a)
        if not A:
            p_compute(a, 0)
            stamp_store(a, kid, N+"p", 2)
            a.label(f"L_{N}_A1")
            a("s_endpgm")
    if A:
        a(f"""s_cmp_lt_u32 s{S_WAVE}, 4
        s_cbranch_scc1 L_{N}_A2c
        s_setprio 3""")
        g2.ld_init(a)
        if P:
            for e in range(g2.LA): g2.issue(a, (g2.B,))
            p_compute(a, g2.LA*g2.B.q)
            get_nonce(a, "a2")
            a(f"""s_lshl_b32 s52, s{S_TA}, 7
            s_add_u32 s52, s52, {PF}
            v_min_u32 v26, 27, v2
            v_lshl_add_u32 v26, v26, 2, s52
            s_lshl_b32 s53, s{S_TB}, 2
            s_add_u32 s70, s52, s53
            s_barrier""")
            put_flag(a, "p", 70)
            poll(a, "p", 26)
            g2.ld_main(a, pre=g2.B)
        else:
            g2.ld_main(a)
        if B:
            a(f"""s_lshl_b32 s70, s{S_TB}, 7
            s_lshl_b32 s52, s{S_TA}, 2
            s_add_u32 s70, s70, s52
            s_add_u32 s70, s70, {AF}
            s_branch L_{N}_Bl""")
        else: a("s_endpgm")
        a.label(f"L_{N}_A2c")
        if P:
            p_compute(a, 0)
            a("s_waitcnt vmcnt(0)\ns_barrier")
            stamp(a, 1)
        g2.w2_pre(a)
        g2.co_init(a)
        g2.co_main(a, 2, 3)
        if B: a(f"s_branch L_{N}_Bc")
        else:
            stamp_store(a, kid, N+"a2", 5)
            a("s_endpgm")
        a.label(f"L_{N}_A1")
        a(MAP_A1)
        a(f"""s_cmp_lt_u32 s{S_WAVE}, 4
        s_cbranch_scc1 L_{N}_A1c
        s_setprio 3""")
        g1.ld_init(a)
        g1.ld_main(a)
        if B:
            get_nonce(a, "a1")
            a(f"""s_lshl_b32 s70, s{S_XCD}, 7
            s_lshl_b32 s52, s{S_RES}, 2
            s_add_u32 s70, s70, s52
            s_add_u32 s70, s70, {XF}
            s_branch L_{N}_Bl""")
        else: a("s_endpgm")
        a.label(f"L_{N}_A1c")
        stamp(a, 1)
        g1.co_init(a)
        g1.co_main(a, 2, 3)
        if B: a(f"s_branch L_{N}_Bc")
        else:
            stamp_store(a, kid, N+"a1", 5)
            a("s_endpgm")
    if B:
        if not A:
            a(f"""s_cmp_lt_u32 s{S_WAVE}, 4
            s_cbranch_scc1 L_{N}_Bc
            s_setprio 3""")
        a.label(f"L_{N}_Bl")
        a(MAP_B)
        gb.ld_init(a)
        if A:
            a(f"""s_lshr_b32 s52, s{S_TB}, 1
            s_lshl_b32 s52, s52, 7
            s_add_u32 s52, s52, {XF}
            v_and_b32 v26, 3, v2
            v_lshl_add_u32 v26, v26, 2, s52
            s_mul_i32 s52, s{S_TA}, 224
            s_add_u32 s53, s52, 223
            s_lshr_b32 s52, s52, 7
            s_lshr_b32 s53, s53, 7
            v_lshrrev_b32 v27, 3, v2
            v_add_u32 v27, s52, v27
            v_min_u32 v27, s53, v27
            v_lshlrev_b32 v27, 7, v27
            v_and_b32 v28, 7, v2
            v_lshl_add_u32 v27, v28, 2, v27
            v_add_u32 v27, {AF}, v27
            s_barrier""")
            put_flag(a, "a", 70)
            poll(a, "x", 26)
            for e in range(gb.LA): gb.issue(a, (gb.B,))
            poll(a, "a", 27)
            gb.ld_main(a, pre=gb.B)
        else:
            gb.ld_main(a)
        a("s_endpgm")
        a.label(f"L_{N}_Bc")
        if A:
            a("s_waitcnt vmcnt(0)\ns_barrier")
            stamp(a, 4)
        a(MAP_B)
        srd(a, SRD_M, P_OUT, S*F*2)
        gb.co_init(a)
        gb.co_main(a, 5, 6)
        stamp_store(a, kid, N+"b", 8)
    a.label(f"L_{N}_end")
    a("s_endpgm")

def build(mode, TL=False, **dbg):
    C.TL = TL; C.dbg = dbg
    a = Asm()
    if mode == 'fused':
        C.fused = True
        kernel(a, "quip_kernel", "PAB", 0)
    else:
        C.fused = False
        kernel(a, "p_kernel", "P", 0); kernel(a, "a_kernel", "A", 1); kernel(a, "b_kernel", "B", 2)
    return a.text(HEADER)

if __name__ == "__main__":
    open("v4_3l.s", "w").write(build('3l'))
    open("v4_3l_tl.s", "w").write(build('3l', TL=True))
    open("v4_f.s", "w").write(build('fused'))
    open("v4_f_tl.s", "w").write(build('fused', TL=True))
    open("v4_f_dbg.s", "w").write(build('fused', TL=True, dbgtl=1))
```

```python
import sys
from asmlib import Asm

D, F, S = 1024, 3584, 2048
WQ_OFF, XR_OFF, W2_OFF, FLG = 0, 0x800000, 0xC00000, 0x1500000
PF, AF, XF = FLG, FLG + 0x1000, FLG + 0x2000
WS_SIZE = 0x10000000
HEADER = open('standalone__weight_only_int_quip__prompt.s.ref').read().split("; Override")[0]
P_X, P_QW, P_SC, P_Z, P_U, P_V, P_OUT, P_DBG, P_WS = 4, 6, 8, 10, 12, 14, 16, 18, 20
SRD_A, SRD_B, SRD_WS, SRD_M = 24, 28, 32, 36
S_TA, S_TB, S_RES, S_WAVE, S_GA, S_GB = 40, 41, 42, 43, 44, 45
S_NONCE, S_XCD, S_IDX, S_LW = 65, 66, 67, 59
S_POS, S_T, S_OWN = 54, 60, 61
SPIN_MAX = 1 << 16
WSR = f"s[{SRD_WS}:{SRD_WS+3}]"

class Cfg:
    TL = False
    dbg = {}
    uid = 0
C = Cfg()
def uid():
    C.uid += 1; return C.uid

def srd(a, d, lo, size):
    a(f"""s_mov_b32 s{d}, s{lo}
    s_mov_b32 s{d+1}, s{lo+1}
    s_mov_b32 s{d+2}, {size}
    s_mov_b32 s{d+3}, 0x20000""")

def align(a):
    if not C.dbg.get('noalign'): a.lines.append(".p2align 6")

def stamp(a, i):
    if C.TL and i is not None: a(f"s_memrealtime s[{76+2*i}:{77+2*i}]")
def stamp_store(a, lbl, n):
    if C.TL:
        a("s_waitcnt vmcnt(0)")
        stamp(a, n-1)
        a("s_waitcnt lgkmcnt(0)")
        for i in range(8): a(f"v_mov_b32 v{8+i}, s{76+2*min(i,n-1)}")
        a(f"""s_lshl_b32 s72, s2, 5
        s_add_u32 s72, s72, {0x8000000}
        v_mov_b32 v7, 0
        v_cmp_eq_u32 vcc, 0, v0
        s_and_saveexec_b64 s[74:75], vcc
        s_cbranch_execz L_tl{lbl}
        buffer_store_dwordx4 v[8:11], v7, {WSR}, s72 offen
        buffer_store_dwordx4 v[12:15], v7, {WSR}, s72 offen offset:16
        L_tl{lbl}:""")

class Op:
    def __init__(s, kind, BX, WX, ptr, size, off, pitch=0, wsoff=0, flags="", tstride=0):
        s.kind, s.BX, s.WX, s.ptr, s.size, s.off, s.pitch, s.wsoff, s.flags, s.tstride = kind, BX, WX, ptr, size, off, pitch, wsoff, flags, tstride
        s.bytes = BX*128
        s.ndma = BX//8
        s.q = s.ndma//4

class Gemm:
    def __init__(g, name, A, B, KS, NS, NT, n, epi, order, slot0=0):
        g.name, g.A, g.B, g.KS, g.NS, g.NT, g.n, g.epi, g.order, g.slot0 = name, A, B, KS, NS, NT, n, epi, order, slot0
        g.LA = NS-1
        g.peel = 0
        g.lds = max(o.off + NS*o.bytes for o in (A, B))
        A.srd, B.srd = SRD_A, SRD_B
        A.st, B.st = S_TA, S_TB
        A.sb, B.sb = 46, 47
        A.so, B.so = 48, 49
        A.nx, B.nx = 62, 63
        A.sm, B.sm = 55, 56
        A.vd, B.vd = 16, 20
        A.sg, B.sg = S_GA, S_GB
        for o in (A, B):
            if o.kind in 'FL': o.kstride, o.gstride = o.bytes, 4096
            elif o.kind == 'T': o.kstride, o.gstride = 64*o.pitch, 16*o.pitch
            else: o.kstride, o.gstride = 128, 32*o.pitch
        vr = [16]
        def valloc(k, al=1):
            while vr[0] % al: vr[0] += 1
            r = vr[0]; vr[0] += k; return r
        for o in (A, B):
            o.nadr = {'F': 1, 'T': o.WX, 'R': 2, 'L': 2}[o.kind]
            o.spr = max(1, 65536 // o.bytes)
            o.nrange = (NS + o.spr - 1)//o.spr
            o.vrd = valloc(o.nadr*o.nrange)
        g.fr = [[valloc(4*A.WX, 4), valloc(4*B.WX, 4)] for _ in range(2)]
        g.acc = valloc(4*A.WX*B.WX, 4)
        g.nv = vr[0]

    def ld_init(g, a):
        A, B = g.A, g.B
        srd(a, A.srd, A.ptr, A.size); srd(a, B.srd, B.ptr, B.size)
        for o in (A, B):
            if o.kind in 'FL':
                a(f"""v_lshlrev_b32 v{o.vd}, 4, v2
                s_mul_i32 s{o.sb}, s{o.st}, {g.KS*o.bytes}
                s_mul_i32 s52, s{S_LW}, {o.q*1024}
                s_add_u32 s52, s52, {o.wsoff}
                s_add_u32 s{o.sb}, s{o.sb}, s52""")
            elif o.kind == 'T':
                assert o.BX == 128
                a(f"""v_mul_u32_u24 v5, {o.pitch}, v4
                v_lshlrev_b32 v6, 1, v4
                v_xor_b32 v6, v6, v3
                v_lshl_add_u32 v7, v6, 4, v5
                v_xor_b32 v6, 8, v6
                v_lshl_add_u32 v8, v6, 4, v5""")
                for ii in range(4):
                    a(f"v_add_u32 v{o.vd+ii}, {ii*(4*o.pitch-1024)}, v{7 if ii < 2 else 8}")
                a(f"""s_lshl_b32 s{o.sb}, s{o.st}, 8
                s_mul_i32 s52, s{S_LW}, {o.q//4*o.gstride}
                s_add_u32 s{o.sb}, s{o.sb}, s52""")
            else:
                a(f"""v_lshrrev_b32 v5, 3, v2
                v_and_b32 v6, 7, v2
                v_lshrrev_b32 v7, 1, v5
                v_xor_b32 v6, v6, v7
                v_mul_u32_u24 v5, {o.pitch}, v5
                v_lshl_add_u32 v7, v6, 4, v5
                v_xor_b32 v6, 4, v6
                v_lshl_add_u32 v8, v6, 4, v5""")
                for ii in range(4):
                    a(f"v_add_u32 v{o.vd+ii}, {ii*(8*o.pitch-1024)}, v{7 if ii % 2 == 0 else 8}")
                a(f"""s_mul_i32 s{o.sb}, s{o.st}, {o.BX*o.pitch}
                s_mul_i32 s52, s{S_LW}, {o.q//4*o.gstride}
                s_add_u32 s{o.sb}, s{o.sb}, s52""")
        a(f"""s_mul_i32 s50, s{S_LW}, {A.q*1024}
        s_add_u32 s50, s50, {A.off}
        s_mul_i32 s51, s{S_LW}, {B.q*1024}
        s_add_u32 s51, s51, {B.off}
        s_add_u32 s57, s50, {g.NS*A.bytes}
        s_add_u32 s58, s{S_RES}, {g.KS-g.n}""")
        g.ld_rewind(a)
    def ld_rewind(g, a):
        a(f"""s_mov_b32 s{S_POS}, 0
        s_mov_b32 s{S_T}, 0
        s_add_u32 s55, s50, {g.slot0*g.A.bytes}
        s_add_u32 s56, s51, {g.slot0*g.B.bytes}""")
        a(g.setup())
    def latin(g, j):
        n = g.n
        return f"""s_sub_u32 s52, {j}, 1
        s_and_b32 s53, s52, {n-1}
        s_cmp_eq_u32 s53, s{S_RES}
        s_cselect_b32 s53, {n}, 0
        s_cmp_ge_u32 s52, s58
        s_cselect_b32 s53, 1, s53
        s_add_u32 s52, s52, s53
        s_cmp_eq_u32 {j}, 0
        s_cselect_b32 s52, s{S_RES}, s52"""
    def setup(g):
        A, B = g.A, g.B
        if g.order == 'latin':
            t = f"s_and_b32 s{S_T}, s{S_POS}, {g.KS-1}\n" + g.latin(f"s{S_T}") + f"\ns_add_u32 s52, s52, s{S_OWN}\ns_and_b32 s52, s52, {g.KS-1}"
        elif g.order == 'rot':
            t = f"s_lshl_b32 s52, s{S_OWN}, 1\ns_add_u32 s52, s52, s{S_POS}\ns_and_b32 s52, s52, {g.KS-1}"
        else:
            u = uid()
            t = f"""s_lshl_b32 s52, s{S_OWN}, 1
            s_add_u32 s52, s52, s{S_POS}
            s_cmp_lt_u32 s{S_POS}, 2
            s_cbranch_scc1 L_ord{u}_d
            L_ord{u}:
            {g.latin(f"s{S_T}")}
            s_add_u32 s{S_T}, s{S_T}, 1
            s_lshr_b32 s53, s52, 1
            s_cmp_eq_u32 s53, s{S_OWN}
            s_cbranch_scc1 L_ord{u}
            L_ord{u}_d:"""
        t += f"""
        s_mul_i32 s{A.nx}, s52, {A.kstride}
        s_add_u32 s{A.nx}, s{A.nx}, s{A.sb}
        s_mul_i32 s{B.nx}, s52, {B.kstride}
        s_add_u32 s{B.nx}, s{B.nx}, s{B.sb}"""
        if g.NT > 1:
            t += f"\ns_lshr_b32 s53, s{S_POS}, {g.KS.bit_length()-1}"
            for o in (A, B):
                if o.tstride: t += f"\ns_mul_i32 s52, s53, s69\ns_add_u32 s{o.nx}, s{o.nx}, s52"
        return t
    def issue(g, a, ops=None):
        A, B = g.A, g.B
        ops = ops or (A, B)
        adv = f"""s_add_u32 s55, s55, {A.bytes}
        s_add_u32 s56, s56, {B.bytes}
        s_cmp_eq_u32 s55, s57
        s_cselect_b32 s55, s50, s55
        s_cselect_b32 s56, s51, s56
        s_cmp_lt_u32 s{S_POS}, {g.KS*g.NT - g.peel}
        s_cselect_b32 s64, 1, 0"""
        for k, o in enumerate(ops):
            for i in range(o.q):
                if i == 0:
                    a(f"s_mov_b32 m0, s{o.sm}")
                    if k == 0: a(f"s_mov_b32 s{A.so}, s{A.nx}\ns_mov_b32 s{B.so}, s{B.nx}")
                    else: a("s_nop 0")
                elif i % 4 == 0: a(f"s_add_u32 m0, m0, 4096\ns_add_u32 s{o.so}, s{o.so}, {o.gstride}")
                v = o.vd if o.kind in 'FL' else o.vd + i % 4
                a(f"buffer_load_dwordx4 v{v}, s[{o.srd}:{o.srd+3}], s{o.so} offen offset:{(i%4)*1024} {o.flags} lds")
                if k == 0 and i == 1:
                    a(f"s_add_u32 s{S_POS}, s{S_POS}, 1")
                    a(g.setup())
                if k == len(ops)-1 and i == (2 if k == 0 else 0): a(adv)
    def ld_loop(g, a):
        pw = g.A.q + g.B.q
        align(a)
        a.label(f"L_{g.name}_go")
        g.issue(a)
        a(f"""s_cmp_eq_u32 s64, 1
        s_waitcnt vmcnt({(g.LA-1)*pw})
        s_barrier
        s_cbranch_scc1 L_{g.name}_go""")
    def ld_tail(g, a, hook=None):
        pw = g.A.q + g.B.q
        for e in range(g.LA-2, -1, -1):
            a(f"s_waitcnt vmcnt({e*pw})\ns_barrier")
        if hook: hook(a)
        a("s_barrier")
    def ld_plain_start(g, a):
        for e in range(g.LA): g.issue(a)
        a(f"s_waitcnt vmcnt({(g.LA-1)*(g.A.q+g.B.q)})\ns_barrier")
    def ld_own_start(g, a, havB, vpoll, lbl):
        A, B, LA, NS = g.A, g.B, g.LA, g.NS
        pw = A.q + B.q
        st = (S_POS, S_T, 55, 56, A.nx, B.nx)
        if havB: g.ld_rewind(a)
        w0 = A.q if havB else pw
        for e in range(2): g.issue(a, (A,) if havB else (B, A))
        for k, r in enumerate(st): a(f"s_mov_b32 s{84+k}, s{r}")
        for p in range(2, NS): g.issue(a, (B,))
        a(f"buffer_load_dword v25, v{vpoll}, {WSR}, 0 offen sc1")
        y = (NS-2)*B.q + 1
        a(f"s_waitcnt vmcnt({w0+y})\ns_barrier\ns_waitcnt vmcnt({y})\ns_barrier")
        g.issue(a, (B,))
        for k, r in enumerate(st): a(f"s_mov_b32 s{r}, s{84+k}")
        a(f"""s_waitcnt vmcnt({B.q})
        v_cmp_ne_u32 vcc, s{S_NONCE}, v25
        s_cbranch_vccz L_own{lbl}""")
        poll(a, lbl, vpoll)
        a.label(f"L_own{lbl}")
        for p in range(2, NS+1): g.issue(a, (A,))
        a(f"s_waitcnt vmcnt({(NS-2)*A.q})\ns_barrier")
        for e in range(LA-2):
            g.issue(a)
            a(f"s_waitcnt vmcnt({(LA-2-e)*A.q + (e+1)*pw})\ns_barrier")

    def co_init(g, a):
        for o in (g.A, g.B):
            if o.kind == 'F':
                a(f"""s_mul_i32 s52, s{o.sg}, {o.WX*1024}
                s_add_u32 s52, s52, {o.off}
                v_lshl_add_u32 v{o.vrd}, v2, 4, s52""")
            elif o.kind == 'T':
                a(f"""v_lshrrev_b32 v5, 2, v3
                v_lshl_add_u32 v6, v4, 3, v5
                v_lshlrev_b32 v6, 8, v6
                v_and_b32 v7, 3, v2
                v_lshl_add_u32 v6, v7, 3, v6
                v_add_u32 v6, {o.off}, v6
                v_and_b32 v7, 1, v4
                v_lshl_or_b32 v5, v7, 2, v5
                s_mul_i32 s52, s{o.sg}, {o.WX}""")
                for b in range(o.WX):
                    a(f"""s_add_u32 s53, s52, {b}
                    v_xor_b32 v7, s53, v5
                    v_lshl_add_u32 v{o.vrd+b}, v7, 5, v6""")
            else:
                a(f"""s_mul_i32 s52, s{o.sg}, {o.WX*2048}
                s_add_u32 s52, s52, {o.off}
                v_lshl_add_u32 v5, v3, 7, s52
                v_lshrrev_b32 v6, 1, v3
                v_xor_b32 v6, v6, v4
                v_lshl_add_u32 v{o.vrd}, v6, 4, v5
                v_xor_b32 v6, 4, v6
                v_lshl_add_u32 v{o.vrd+1}, v6, 4, v5""")
            for rg in range(1, o.nrange):
                for i in range(o.nadr):
                    a(f"v_add_u32 v{o.vrd+rg*o.nadr+i}, {rg*o.spr*o.bytes}, v{o.vrd+i}")
        g.zero(a)
    def zero(g, a):
        for i in range(4*g.A.WX*g.B.WX): a(f"v_mov_b32 v{g.acc+i}, 0")
    def reads(g, setn, slot, ksub):
        r = []
        for oi, o in enumerate((g.A, g.B)):
            f = g.fr[setn][oi]
            rg = slot // o.spr; so = (slot % o.spr)*o.bytes; vb = o.vrd + rg*o.nadr
            for x in range(o.WX):
                if o.kind == 'F': r.append(f"ds_read_b128 v[{f+4*x}:{f+4*x+3}], v{vb} offset:{so+(ksub*(o.BX//16)+x)*1024}")
                elif o.kind in 'RL': r.append(f"ds_read_b128 v[{f+4*x}:{f+4*x+3}], v{vb+ksub} offset:{so+x*2048}")
                else:
                    for t in range(2):
                        r.append(f"ds_read_b64_tr_b16 v[{f+4*x+2*t}:{f+4*x+2*t+1}], v{vb+x} offset:{so+ksub*8192+t*1024}")
        return r
    def mfmas(g, setn):
        WA, WB = g.A.WX, g.B.WX
        m = []
        for x in range(WA):
            for yy in range(WB):
                y = yy if x % 2 == 0 else WB-1-yy
                c = g.acc + 4*(x*WB+y)
                fa, fb = g.fr[setn][0]+4*x, g.fr[setn][1]+4*y
                m.append(f"v_mfma_f32_16x16x32_bf16 v[{c}:{c+3}], v[{fa}:{fa+3}], v[{fb}:{fb+3}], v[{c}:{c+3}]")
        return m
    def co_main(g, a, st_loop=None, st_end=None):
        L, NS = g.name, g.NS
        def inter(ms, fill):
            out = []
            for i, m in enumerate(ms):
                out.append(m)
                if i < len(fill): out += fill[i]
            assert len(fill) <= len(ms)
            return out
        a("s_mov_b32 s57, 0\ns_mov_b32 s58, 0\ns_barrier")
        stamp(a, st_loop)
        for i in g.reads(0, g.slot0, 0): a(i)
        align(a)
        for k in range(NS):
            sl = (g.slot0 + k) % NS
            a.label(f"L_{L}_c{k}")
            a("s_waitcnt lgkmcnt(0)")
            fill = [[r] for r in g.reads(1, sl, 1)] + [["s_add_u32 s57, s57, 1", f"s_cmp_lt_u32 s57, {g.KS}"]]
            lf = C.dbg.get('lfine') == g.epi
            if lf: fill = [["s_memrealtime s[92:93]"]] + fill
            for i in inter(g.mfmas(0), fill): a(i)
            a("s_waitcnt lgkmcnt(0)\ns_barrier")
            if lf: a("s_mov_b32 m0, s57\ns_nop 0\nv_writelane_b32 v15, s92, m0")
            for i in inter(g.mfmas(1), [[r] for r in g.reads(0, (sl+1) % NS, 0)]): a(i)
            if k < NS-1: a(f"s_cbranch_scc0 L_{L}_done")
            else: a(f"s_cbranch_scc1 L_{L}_c0")
        a.label(f"L_{L}_done")
        a("s_nop 7")
        stamp(a, st_end)
        if C.dbg.get('lfine') == g.epi:
            a(f"""v_writelane_b32 v15, s76, 0
            s_lshl_b32 s72, s2, 8
            s_add_u32 s72, s72, {0x8100000}
            v_lshlrev_b32 v5, 2, v2
            s_cmp_eq_u32 s{S_WAVE}, 0
            s_cbranch_scc0 L_lf_{L}
            buffer_store_dword v15, v5, {WSR}, s72 offen
            L_lf_{L}:""")
        g.epilogue(a)
        if g.NT > 1:
            g.post_tile(a)
            assert g.NT == 2
            a(f"""s_cmp_eq_u32 s58, 1
            s_cbranch_scc1 L_{L}_fin
            s_mov_b32 s58, 1
            s_mov_b32 s57, 0
            s_xor_b32 s{S_TA}, s{S_TA}, 4""")
            g.zero(a)
            a(f"s_branch L_{L}_c{g.KS % NS}")
            a.label(f"L_{L}_fin")
        a("s_waitcnt lgkmcnt(0)")
    def epilogue(g, a):
        A, B, WA, WB = g.A, g.B, g.A.WX, g.B.WX
        t = g.fr[1][0]
        def Cc(x, y, i): return g.acc + 4*(x*WB+y) + i
        def pack(r, p, y):
            return f"""v_cvt_pk_bf16_f32 v{r}, v{Cc(2*p,y,0)}, v{Cc(2*p,y,1)}
                v_cvt_pk_bf16_f32 v{r+1}, v{Cc(2*p,y,2)}, v{Cc(2*p,y,3)}
                v_cvt_pk_bf16_f32 v{r+2}, v{Cc(2*p+1,y,0)}, v{Cc(2*p+1,y,1)}
                v_cvt_pk_bf16_f32 v{r+3}, v{Cc(2*p+1,y,2)}, v{Cc(2*p+1,y,3)}"""
        n = 0
        if g.epi == 'w2':
            for p in range(WA//2):
                for y in range(WB):
                    r = t + 4*(n % 8); n += 1
                    a(pack(r, p, y))
                    a(f"buffer_store_dwordx4 v[{r}:{r+3}], v12, {WSR}, s{60+p} offen offset:{(y>>1)*2048+(y&1)*128} sc1")
        elif g.epi == 'xr':
            a(f"""v_lshlrev_b32 v5, 4, v2
            s_lshl_b32 s52, s{S_TB}, 5
            s_lshl_b32 s53, s{S_TA}, 2
            s_add_u32 s52, s52, s53
            s_lshl_b32 s53, s{S_GA}, 1
            s_add_u32 s52, s52, s53
            s_lshl_b32 s52, s52, 1
            s_add_u32 s52, s52, s{S_GB}
            s_lshl_b32 s52, s52, 13
            s_add_u32 s52, s52, {XR_OFF}""")
            for p in range(WA//2):
                for y in range(WB):
                    r = t + 4*(n % 8); n += 1
                    if y == 4: a("s_add_u32 s53, s52, 4096")
                    a(pack(r, p, y))
                    a(f"buffer_store_dwordx4 v[{r}:{r+3}], v5, {WSR}, s{52 if y < 4 else 53} offen offset:{(y%4)*1024} sc1")
                a("s_add_u32 s52, s52, 16384")
        else:
            O = f"s[{SRD_M}:{SRD_M+3}]"
            of = C.dbg.get('outflag', 'nt')
            PIT = 144
            a("s_waitcnt lgkmcnt(0)")
            t0 = g.fr[0][0]
            def wr(y):
                for p in range(2):
                    r = t0 + 8*(y % 2) + 4*p
                    a(pack(r, p, y))
                    a(f"ds_write_b128 v12, v[{r}:{r+3}] offset:{y*16*PIT + p*64}")
            def rd(y):
                for h in range(2):
                    r = t0 + 16 + 8*(y % 8) + 4*h
                    a(f"ds_read_b128 v[{r}:{r+3}], v13 offset:{(y*16+h*8)*PIT}")
            def st(y):
                for h in range(2):
                    r = t0 + 16 + 8*(y % 8) + 4*h
                    a(f"buffer_store_dwordx4 v[{r}:{r+3}], v14, {O}, s60 offen {of}")
                    a(f"s_add_u32 s60, s60, {8*F*2}")
            wr(0); rd(0)
            for y in range(1, WB):
                wr(y); rd(y)
                a("s_waitcnt lgkmcnt(4)")
                st(y-1)
            a("s_waitcnt lgkmcnt(0)")
            st(WB-1)
    def epi_pre(g, a):
        if g.epi == 'w2':
            a(f"""v_bfe_u32 v5, v3, 2, 1
            v_lshlrev_b32 v12, 10, v5
            v_lshrrev_b32 v5, 3, v3
            v_lshl_add_u32 v12, v5, 6, v12
            v_and_b32 v5, 3, v3
            v_lshl_add_u32 v12, v5, 4, v12
            v_lshl_add_u32 v12, v4, 8, v12
            s_lshl_b32 s52, s{S_TB}, 5
            s_lshl_b32 s53, s{S_TA}, 2
            s_add_u32 s52, s52, s53
            s_lshl_b32 s53, s{S_GA}, 1
            s_add_u32 s52, s52, s53
            s_lshl_b32 s52, s52, 1
            s_add_u32 s52, s52, s{S_GB}
            s_lshl_b32 s60, s52, 12
            s_add_u32 s60, s60, {W2_OFF}
            s_add_u32 s61, s60, 8192""")
        elif g.epi == 'out':
            PIT = 144
            srd(a, SRD_M, P_OUT, S*F*2)
            a(f"""s_mul_i32 s52, s{S_WAVE}, {128*PIT}
            v_mul_u32_u24 v12, {PIT}, v3
            v_lshl_add_u32 v12, v4, 4, v12
            v_add_u32 v12, s52, v12
            v_lshrrev_b32 v6, 3, v2
            v_and_b32 v7, 7, v2
            v_mul_u32_u24 v13, {PIT}, v6
            v_lshl_add_u32 v13, v7, 4, v13
            v_add_u32 v13, s52, v13
            v_mul_u32_u24 v14, {F*2}, v6
            v_lshl_add_u32 v14, v7, 4, v14
            s_lshl_b32 s52, s{S_TB}, 1
            s_add_u32 s52, s52, s{S_GB}
            s_mul_i32 s60, s52, {128*F*2}
            s_lshl_b32 s53, s{S_TA}, 1
            s_add_u32 s53, s53, s{S_GA}
            s_lshl_b32 s53, s53, 7
            s_add_u32 s60, s60, s53""")

def p_loads(a):
    srd(a, SRD_M, P_QW, D*F*4)
    a(f"""v_mul_u32_u24 v32, {F*4}, v4
    v_lshl_add_u32 v32, v3, 4, v32
    s_and_b32 s52, s{S_WAVE}, 1
    s_lshl_b32 s53, s{S_TB}, 1
    s_add_u32 s68, s52, s53               ; kstep
    s_lshr_b32 s69, s{S_WAVE}, 1
    s_lshl_b32 s52, s{S_TA}, 2
    s_add_u32 s52, s52, s69
    s_mul_i32 s52, s52, {32*F*4}
    s_lshl_b32 s53, s68, 8
    s_add_u32 s52, s52, s53""")
    for i in range(8):
        a(f"buffer_load_dwordx4 v[{64+4*i}:{67+4*i}], v32, s[{SRD_M}:{SRD_M+3}], s52 offen {C.dbg.get('qnt','nt')}")
        if i == 1:
            a(f"""s_mul_i32 s70, s{S_TA}, {F*2}
            s_lshl_b32 s53, s68, 7
            s_add_u32 s70, s70, s53
            v_lshl_add_u32 v33, v3, 3, s70
            global_load_dwordx2 v[40:41], v33, s[{P_SC}:{P_SC+1}]
            global_load_dwordx2 v[42:43], v33, s[{P_Z}:{P_Z+1}]""")
        if i < 7: a(f"s_add_u32 s52, s52, {4*F*4}")

def p_compute(a, younger):
    a(f"""v_lshrrev_b32 v5, 1, v3
    v_lshrrev_b32 v6, 5, v2
    v_xor_b32 v5, v5, v6
    v_lshlrev_b32 v5, 4, v5
    v_lshl_add_u32 v5, v4, 7, v5
    v_and_b32 v6, 1, v2
    v_lshl_add_u32 v44, v6, 3, v5
    v_xor_b32 v45, 32, v44
    v_xor_b32 v46, 64, v44
    v_xor_b32 v47, 0x60, v44
    s_mul_i32 s52, s{S_TA}, 56
    s_add_u32 s52, s52, s68
    s_lshl_b32 s52, s52, 14
    s_lshl_b32 s53, s69, 12
    s_add_u32 s52, s52, s53
    s_add_u32 s52, s52, {WQ_OFF}
    s_waitcnt vmcnt({6+younger})""")
    if C.dbg.get('pfine'): stamp(a, 1)
    for j in range(2):
        a(f"v_lshlrev_b32 v{48+2*j}, 16, v{40+j}")
        a(f"v_and_b32 v{49+2*j}, 0xffff0000, v{40+j}")
        a(f"v_lshlrev_b32 v{52+2*j}, 16, v{42+j}")
        a(f"v_and_b32 v{53+2*j}, 0xffff0000, v{42+j}")
    for it in range(4):
        if it: a(f"s_waitcnt vmcnt({6-2*it+younger+2*it})")
        if it == 3 and C.dbg.get('pfine'): stamp(a, 2)
        b = 64+8*it
        for j in range(8): a(f"v_cvt_f32_i32 v{b+j}, v{b+j}")
        for j in range(4): a(f"v_cvt_pk_bf16_f32 v{36+j}, v{b+2*j}, v{b+2*j+1}")
        for j in range(4):
            a(f"v_lshlrev_b32 v{b+2*j}, 16, v{36+j}")
            a(f"v_and_b32 v{b+2*j+1}, 0xffff0000, v{36+j}")
        for j in range(8): a(f"v_sub_f32 v{b+j}, v{b+j}, v{52+j%4}")
        for j in range(4): a(f"v_cvt_pk_bf16_f32 v{36+j}, v{b+2*j}, v{b+2*j+1}")
        for j in range(4):
            a(f"v_lshlrev_b32 v{b+2*j}, 16, v{36+j}")
            a(f"v_and_b32 v{b+2*j+1}, 0xffff0000, v{36+j}")
        for j in range(8): a(f"v_mul_f32 v{b+j}, v{b+j}, v{48+j%4}")
        o = 96+4*it
        for j in range(4): a(f"v_cvt_pk_bf16_f32 v{o+j}, v{b+2*j}, v{b+2*j+1}")
        for h in range(2):
            i = 2*it+h
            a(f"buffer_store_dwordx2 v[{o+2*h}:{o+2*h+1}], v{44+i%4}, {WSR}, s52 offen offset:{i*512} sc1")

def get_nonce(a, lbl, va=24, vd=25):
    a(f"""v_mov_b32 v{va}, 0
    s_mov_b32 s71, 0
    L_nonce{lbl}:
    global_load_dword v{vd}, v{va}, s[{P_DBG}:{P_DBG+1}] sc1
    s_add_u32 s71, s71, 1
    s_waitcnt vmcnt(0)
    v_readfirstlane_b32 s{S_NONCE}, v{vd}
    s_cmp_gt_u32 s71, {SPIN_MAX}
    s_cbranch_scc1 L_nonce{lbl}_ok
    s_cmp_eq_u32 s{S_NONCE}, 0
    s_cbranch_scc1 L_nonce{lbl}
    L_nonce{lbl}_ok:""")

def put_flag(a, lbl, soff):
    a(f"""s_cmp_eq_u32 s{S_LW}, 0
    s_cbranch_scc0 L_pf{lbl}
    v_mov_b32 v24, 0
    v_mov_b32 v25, s{S_NONCE}
    s_mov_b64 exec, 1
    buffer_store_dword v25, v24, {WSR}, s{soff} offen sc1
    s_mov_b64 exec, -1
    L_pf{lbl}:""")

def poll(a, lbl, vaddr):
    a(f"""s_mov_b32 s71, 0
    L_poll{lbl}:
    buffer_load_dword v25, v{vaddr}, {WSR}, 0 offen sc1
    s_add_u32 s71, s71, 1
    s_waitcnt vmcnt(0)
    v_cmp_ne_u32 vcc, s{S_NONCE}, v25
    s_cbranch_vccz L_poll{lbl}_ok
    s_sleep {C.dbg.get('psleep', 1)}
    s_cmp_lt_u32 s71, {SPIN_MAX}
    s_cbranch_scc1 L_poll{lbl}
    L_poll{lbl}_ok:""")

MAP_83 = f"""s_mul_i32 s52, s{S_XCD}, 28
    s_add_u32 s52, s52, s{S_IDX}
    s_and_b32 s{S_TA}, s52, 7
    s_lshr_b32 s{S_TB}, s52, 3
    s_lshl_b32 s{S_RES}, s{S_TB}, 1
    s_add_u32 s{S_RES}, s{S_RES}, s{S_TA}
    s_and_b32 s{S_RES}, s{S_RES}, 7"""
MAP_47 = f"""s_and_b32 s{S_TA}, s{S_XCD}, 1
    s_lshl_b32 s{S_TA}, s{S_TA}, 2
    s_and_b32 s{S_RES}, s{S_IDX}, 3
    s_add_u32 s{S_TA}, s{S_TA}, s{S_RES}
    s_lshr_b32 s{S_TB}, s{S_XCD}, 1
    s_mul_i32 s{S_TB}, s{S_TB}, 7
    s_lshr_b32 s53, s{S_IDX}, 2
    s_add_u32 s{S_TB}, s{S_TB}, s53
    s_add_u32 s{S_RES}, s{S_RES}, s53
    s_and_b32 s{S_RES}, s{S_RES}, 3"""
MAP_A1 = f"""s_sub_u32 s{S_RES}, s{S_IDX}, 28
    s_add_u32 s{S_TA}, s{S_RES}, s{S_XCD}
    s_and_b32 s{S_TA}, s{S_TA}, 7
    s_cmp_lt_u32 s{S_TA}, 4
    s_cselect_b32 s69, 1, -1
    s_lshl_b32 s69, s69, 10
    s_mov_b32 s{S_TB}, s{S_XCD}
    s_lshl_b32 s{S_OWN}, s{S_XCD}, 1"""
SWAP = f"""s_mov_b32 s52, s{S_TA}
    s_mov_b32 s{S_TA}, s{S_TB}
    s_mov_b32 s{S_TB}, s52"""

def kernel(a, N):
    dbg = C.dbg
    m83 = dbg.get('m83')
    g2 = Gemm(N+"a2", Op('L', 128, 4, P_WS, WS_SIZE, 0, wsoff=WQ_OFF, flags="sc1"), Op('T', 128, 4, P_V, F*F*2, 65536, pitch=F*2), 56, 4, 1, 8 if m83 else 4, 'w2', 'own')
    g1 = Gemm(N+"a1", Op('T', 128, 4, P_U, D*D*2, 0, pitch=D*2, tstride=256), Op('R', 256, 8, P_X, S*D*2, 49152, pitch=D*2), 16, 3, 2, 4, 'xr', 'latin')
    gb = Gemm(N+"b", Op('F', 128, 4, P_WS, WS_SIZE, 0, wsoff=W2_OFF, flags="sc1"), Op('F', 256, 8, P_WS, WS_SIZE, 65536, wsoff=XR_OFF, flags="sc1"), 16, 3, 1, dbg.get('bn', 4), 'out', dbg.get('bord', 'rot'), slot0=2)
    g2.peel = 1
    lds = max(g.lds for g in (g2, g1, gb))
    nv = max(g.nv for g in (g2, g1, gb))
    a.kernel(N, 256, 512, lds, nv)
    a(f"""s_cmp_ge_u32 s2, 256
    s_cbranch_scc1 L_{N}_end
    s_load_dwordx16 s[4:19], s[0:1], 0
    s_load_dwordx2 s[20:21], s[0:1], 64""")
    stamp(a, 0)
    a(f"""s_memrealtime s[22:23]
    v_lshrrev_b32 v1, 6, v0
    v_and_b32 v2, 63, v0
    s_and_b32 s{S_XCD}, s2, 7
    v_readfirstlane_b32 s{S_WAVE}, v1
    s_lshr_b32 s{S_IDX}, s2, 3
    v_and_b32 v3, 15, v2
    v_lshrrev_b32 v4, 4, v2
    s_and_b32 s{S_GA}, s{S_WAVE}, 1
    s_lshr_b32 s{S_GB}, s{S_WAVE}, 1
    s_sub_u32 s{S_LW}, s{S_WAVE}, 4
    s_waitcnt lgkmcnt(0)""")
    srd(a, SRD_WS, P_WS, WS_SIZE)
    a(f"""s_cmp_eq_u32 s2, 0
    s_cbranch_scc0 L_{N}_nn
    s_cmp_eq_u32 s{S_WAVE}, 0
    s_cbranch_scc0 L_{N}_nn
    s_or_b32 s22, s22, 1
    v_mov_b32 v24, 0
    v_mov_b32 v25, s22
    s_mov_b64 exec, 1
    global_store_dword v24, v25, s[{P_DBG}:{P_DBG+1}] sc1
    s_mov_b64 exec, -1
    L_{N}_nn:
    s_cmp_ge_u32 s{S_IDX}, 28
    s_cbranch_scc1 L_{N}_A1""")
    a(MAP_83 if m83 else MAP_47)
    p_loads(a)
    a(f"""s_cmp_lt_u32 s{S_WAVE}, 4
    s_cbranch_scc1 L_{N}_A2c""")
    a(f"""v_mov_b32 v24, 0
    global_load_dword v25, v24, s[{P_DBG}:{P_DBG+1}] sc1
    s_mov_b32 s{S_OWN}, s{S_TB}""")
    g2.ld_init(a)
    p_compute(a, 1)
    a("s_setprio 3")
    a(f"""s_waitcnt vmcnt(8)
    v_readfirstlane_b32 s{S_NONCE}, v25
    s_cmp_lg_u32 s{S_NONCE}, 0
    s_cbranch_scc1 L_{N}_havenonce""")
    get_nonce(a, "a2")
    a(f"""L_{N}_havenonce:
    s_lshl_b32 s52, s{S_TA}, 7
    s_add_u32 s52, s52, {PF}
    v_min_u32 v26, 27, v2
    v_lshl_add_u32 v26, v26, 2, s52
    s_lshl_b32 s53, s{S_TB}, 2
    s_add_u32 s70, s52, s53
    s_waitcnt vmcnt(0)
    s_barrier""")
    put_flag(a, "p", 70)
    g2.ld_own_start(a, False, 26, "p")
    a(f"""s_lshl_b32 s52, s{S_TA}, 7
    s_add_u32 s52, s52, {XF}
    v_lshl_add_u32 v26, v3, 2, s52
    v_add_u32 v28, 64, v26""")
    g2.ld_loop(a)
    pw2 = g2.A.q + g2.B.q
    assert g2.LA == 3
    a(f"buffer_load_dword v25, v26, {WSR}, 0 offen sc1")
    g2.issue(a)
    a(f"""s_waitcnt vmcnt({2*pw2+1})
    s_barrier
    s_lshl_b32 s70, s{S_TB}, 7
    s_add_u32 s70, s70, {AF}
    v_and_b32 v27, 7, v2
    v_lshl_add_u32 v27, v27, 2, s70
    s_lshl_b32 s52, s{S_TA}, 2
    s_add_u32 s70, s70, s52
    s_mov_b32 s{S_OWN}, s{S_TA}
    s_add_u32 s{S_RES}, s{S_TA}, s{S_TB}
    s_and_b32 s{S_RES}, s{S_RES}, {gb.n-1}""")
    a(SWAP)
    gb.ld_init(a)
    a(f"""s_waitcnt vmcnt({pw2})
    s_barrier
    s_mov_b32 s73, 0
    v_cmp_ne_u32 vcc, s{S_NONCE}, v25
    s_cbranch_vccnz L_{N}_noxr
    s_mov_b32 s73, 1""")
    gb.issue(a, (gb.B,))
    a(f"s_waitcnt vmcnt({gb.B.q})\ns_barrier")
    gb.issue(a, (gb.B,))
    a(f"""s_branch L_{N}_xr2
    L_{N}_noxr:
    s_waitcnt vmcnt(0)
    s_barrier
    L_{N}_xr2:
    s_barrier""")
    a("s_barrier")
    put_flag(a, "a", 70)
    a(f"""s_cmp_eq_u32 s73, 1
    s_cbranch_scc1 L_{N}_havexr""")
    poll(a, "x", 26)
    for e in range(2): gb.issue(a, (gb.B,))
    a.label(f"L_{N}_havexr")
    gb.ld_own_start(a, True, 27, "a")
    pwb = gb.A.q + gb.B.q
    assert gb.LA == 2 and gb.order == 'rot'
    for p in range(4, 8):
        if p == 6: a(f"buffer_load_dword v25, v28, {WSR}, 0 offen sc1")
        gb.issue(a)
        a(f"s_waitcnt vmcnt({pwb})\ns_barrier")
    a(f"""v_cmp_ne_u32 vcc, s{S_NONCE}, v25
    s_cbranch_vccz L_{N}_x2ok""")
    poll(a, "x2", 28)
    a.label(f"L_{N}_x2ok")
    gb.ld_loop(a)
    gb.ld_tail(a)
    a("s_endpgm")
    a.label(f"L_{N}_A2c")
    p_compute(a, 0)
    g2.epi_pre(a)
    a("s_waitcnt vmcnt(0)")
    if dbg.get('pfine'): stamp(a, 3)
    a("s_barrier")
    stamp(a, 4 if dbg.get('pfine') else 1)
    g2.co_init(a)
    if dbg.get('pfine'): g2.co_main(a, 5, 6)
    else: g2.co_main(a, 2, 3)
    a(SWAP)
    gb.epi_pre(a)
    a("s_waitcnt vmcnt(0)\ns_barrier")
    if not dbg.get('pfine'): stamp(a, 4)
    gb.co_init(a)
    if dbg.get('pfine'): gb.co_main(a)
    else: gb.co_main(a, 5, 6)
    stamp_store(a, N+"b", 8)
    a("s_endpgm")
    a.label(f"L_{N}_A1")
    a(MAP_A1)
    a(f"""s_cmp_lt_u32 s{S_WAVE}, 4
    s_cbranch_scc1 L_{N}_A1c
    s_setprio 3""")
    g1.ld_init(a)
    g1.ld_plain_start(a)
    g1.ld_loop(a)
    g1.ld_tail(a)
    a("s_endpgm")
    a.label(f"L_{N}_A1c")
    stamp(a, 1)
    a(f"""s_lshl_b32 s70, s{S_XCD}, 7
    s_lshl_b32 s52, s{S_RES}, 4
    s_add_u32 s70, s70, s52
    s_lshl_b32 s52, s{S_WAVE}, 2
    s_add_u32 s70, s70, s52
    s_add_u32 s70, s70, {XF}""")
    def post(a):
        get_nonce(a, "a1", 5, 6)
        a(f"""v_mov_b32 v6, s{S_NONCE}
        s_mov_b64 exec, 1
        buffer_store_dword v6, v5, {WSR}, s70 offen sc1
        s_mov_b64 exec, -1
        s_add_u32 s70, s70, 64""")
    g1.post_tile = post
    g1.co_init(a)
    g1.co_main(a, 2, 3)
    stamp_store(a, N+"a1", 5)
    a.label(f"L_{N}_end")
    a("s_endpgm")

def build(TL=False, **dbg):
    C.TL = TL; C.dbg = dbg; C.uid = 0
    a = Asm()
    kernel(a, "quip_kernel")
    t = a.text(HEADER)
    if not dbg.get('aslist'):
        K = "standalone__weight_only_int_quip__prompt_kernel"
        t = t.replace("; @launch kernel=quip_kernel grid", "; @launch grid")
        t = t.replace(".globl quip_kernel", ".globl " + K).replace(".type quip_kernel,", ".type " + K + ",").replace("\nquip_kernel:", "\n" + K + ":").replace(".amdhsa_kernel quip_kernel", ".amdhsa_kernel " + K)
    return t

if __name__ == "__main__":
    open("v5.s", "w").write(build())
    names = []
    for nm, kw in dict(base={}, outnt=dict(outflag='nt'), lf=dict(lfine='w2'), lfb=dict(lfine='out')).items():
        names.append(f"y_{nm}.s"); open(names[-1], "w").write(build(TL=True, **kw))
    print(" ".join(names))
```

```python
import sys
from asmlib import Asm

D, F, S = 1024, 3584, 2048
WQ_OFF, XR_OFF, W2_OFF, FLG = 0, 0x800000, 0xC00000, 0x1500000
PF, AF, XF = FLG, FLG + 0x10000, FLG + 0x20000
WS_SIZE = 0x10000000
HEADER = open('standalone__weight_only_int_quip__prompt.s.ref').read().split("; Override")[0]
P_X, P_QW, P_SC, P_Z, P_U, P_V, P_OUT, P_DBG, P_WS = 4, 6, 8, 10, 12, 14, 16, 18, 20
SRD_A, SRD_B, SRD_WS, SRD_M = 24, 28, 32, 36
S_TA, S_TB, S_RES, S_WAVE, S_GA, S_GB = 40, 41, 42, 43, 44, 45
S_NONCE, S_XCD, S_IDX, S_LW = 65, 66, 67, 59
S_POS, S_T, S_OWN = 54, 60, 61
S_MASK = 92
SPIN_MAX = 1 << 16
WSR = f"s[{SRD_WS}:{SRD_WS+3}]"

class Cfg:
    TL = False
    dbg = {}
    uid = 0
C = Cfg()
def uid():
    C.uid += 1; return C.uid

def srd(a, d, lo, size):
    a(f"""s_mov_b32 s{d}, s{lo}
    s_mov_b32 s{d+1}, s{lo+1}
    s_mov_b32 s{d+2}, {size}
    s_mov_b32 s{d+3}, 0x20000""")

def align(a):
    if not C.dbg.get('noalign'): a.lines.append(".p2align 6")

def stamp(a, i):
    if C.TL and i is not None: a(f"s_memrealtime s[{76+2*i}:{77+2*i}]")
def stamp_store(a, lbl, n, tid=0):
    if C.TL and (bool(C.dbg.get('ltl')) == (tid != 0) or 'a1' in lbl):
        a("s_waitcnt vmcnt(0)")
        stamp(a, n-1)
        a("s_waitcnt lgkmcnt(0)")
        for i in range(8): a(f"v_mov_b32 v{8+i}, s{76+2*min(i,n-1)}")
        a(f"""s_lshl_b32 s72, s2, 5
        s_add_u32 s72, s72, {0x8000000}
        v_mov_b32 v7, 0
        v_cmp_eq_u32 vcc, {tid}, v0
        s_and_saveexec_b64 s[74:75], vcc
        s_cbranch_execz L_tl{lbl}
        buffer_store_dwordx4 v[8:11], v7, {WSR}, s72 offen
        buffer_store_dwordx4 v[12:15], v7, {WSR}, s72 offen offset:16
        L_tl{lbl}:""")

class Op:
    def __init__(s, kind, BX, WX, ptr, size, off, pitch=0, wsoff=0, flags="", tstride=0):
        s.kind, s.BX, s.WX, s.ptr, s.size, s.off, s.pitch, s.wsoff, s.flags, s.tstride = kind, BX, WX, ptr, size, off, pitch, wsoff, flags, tstride
        s.bytes = BX*128
        s.ndma = BX//8
        s.q = s.ndma//4

class Gemm:
    def __init__(g, name, A, B, KS, NS, NT, n, epi, order, slot0=0):
        g.name, g.A, g.B, g.KS, g.NS, g.NT, g.n, g.epi, g.order, g.slot0 = name, A, B, KS, NS, NT, n, epi, order, slot0
        g.LA = NS-1
        g.peel = 0
        g.lds = max(o.off + NS*o.bytes for o in (A, B))
        A.srd, B.srd = SRD_A, SRD_B
        A.st, B.st = S_TA, S_TB
        A.sb, B.sb = 46, 47
        A.so, B.so = 48, 49
        A.nx, B.nx = 62, 63
        A.sm, B.sm = 55, 56
        A.vd, B.vd = 16, 20
        A.sg, B.sg = S_GA, S_GB
        for o in (A, B):
            if o.kind in 'FL': o.kstride, o.gstride = o.bytes, 4096
            elif o.kind == 'T': o.kstride, o.gstride = 64*o.pitch, 16*o.pitch
            else: o.kstride, o.gstride = 128, 32*o.pitch
        vr = [16]
        def valloc(k, al=1):
            while vr[0] % al: vr[0] += 1
            r = vr[0]; vr[0] += k; return r
        for o in (A, B):
            o.nadr = {'F': 1, 'T': o.WX, 'R': 2, 'L': 2}[o.kind]
            o.spr = max(1, 65536 // o.bytes)
            o.nrange = (NS + o.spr - 1)//o.spr
            o.vrd = valloc(o.nadr*o.nrange)
        g.fr = [[valloc(4*A.WX, 4), valloc(4*B.WX, 4)] for _ in range(2)]
        g.acc = valloc(4*A.WX*B.WX, 4)
        g.nv = vr[0]

    def ld_init(g, a):
        A, B = g.A, g.B
        srd(a, A.srd, A.ptr, A.size); srd(a, B.srd, B.ptr, B.size)
        for o in (A, B):
            if o.kind in 'FL':
                a(f"""v_lshlrev_b32 v{o.vd}, 4, v2
                s_mul_i32 s{o.sb}, s{o.st}, {g.KS*o.bytes}
                s_mul_i32 s52, s{S_LW}, {o.q*1024}
                s_add_u32 s52, s52, {o.wsoff}
                s_add_u32 s{o.sb}, s{o.sb}, s52""")
            elif o.kind == 'T':
                assert o.BX == 128
                a(f"""v_mul_u32_u24 v5, {o.pitch}, v4
                v_lshlrev_b32 v6, 1, v4
                v_xor_b32 v6, v6, v3
                v_lshl_add_u32 v7, v6, 4, v5
                v_xor_b32 v6, 8, v6
                v_lshl_add_u32 v8, v6, 4, v5""")
                for ii in range(4):
                    a(f"v_add_u32 v{o.vd+ii}, {ii*(4*o.pitch-1024)}, v{7 if ii < 2 else 8}")
                a(f"""s_lshl_b32 s{o.sb}, s{o.st}, 8
                s_mul_i32 s52, s{S_LW}, {o.q//4*o.gstride}
                s_add_u32 s{o.sb}, s{o.sb}, s52""")
            else:
                a(f"""v_lshrrev_b32 v5, 3, v2
                v_and_b32 v6, 7, v2
                v_lshrrev_b32 v7, 1, v5
                v_xor_b32 v6, v6, v7
                v_mul_u32_u24 v5, {o.pitch}, v5
                v_lshl_add_u32 v7, v6, 4, v5
                v_xor_b32 v6, 4, v6
                v_lshl_add_u32 v8, v6, 4, v5""")
                for ii in range(4):
                    a(f"v_add_u32 v{o.vd+ii}, {ii*(8*o.pitch-1024)}, v{7 if ii % 2 == 0 else 8}")
                a(f"""s_mul_i32 s{o.sb}, s{o.st}, {o.BX*o.pitch}
                s_mul_i32 s52, s{S_LW}, {o.q//4*o.gstride}
                s_add_u32 s{o.sb}, s{o.sb}, s52""")
        a(f"""s_mul_i32 s50, s{S_LW}, {A.q*1024}
        s_add_u32 s50, s50, {A.off}
        s_mul_i32 s51, s{S_LW}, {B.q*1024}
        s_add_u32 s51, s51, {B.off}
        s_add_u32 s57, s50, {g.NS*A.bytes}
        s_add_u32 s58, s{S_RES}, {g.KS-g.n}""")
        g.ld_rewind(a)
    def ld_rewind(g, a):
        a(f"""s_mov_b32 s{S_POS}, 0
        s_mov_b32 s{S_T}, 0
        s_add_u32 s55, s50, {g.slot0*g.A.bytes}
        s_add_u32 s56, s51, {g.slot0*g.B.bytes}""")
        a(g.setup())
    def latin(g, j):
        n = g.n
        return f"""s_sub_u32 s52, {j}, 1
        s_and_b32 s53, s52, {n-1}
        s_cmp_eq_u32 s53, s{S_RES}
        s_cselect_b32 s53, {n}, 0
        s_cmp_ge_u32 s52, s58
        s_cselect_b32 s53, 1, s53
        s_add_u32 s52, s52, s53
        s_cmp_eq_u32 {j}, 0
        s_cselect_b32 s52, s{S_RES}, s52"""
    def hrot(g):
        if not C.dbg.get('hrot'): return ""
        return f"""s_add_u32 s52, s52, s74
        s_sub_u32 s53, s52, {g.KS}
        s_cmp_ge_u32 s52, {g.KS}
        s_cselect_b32 s52, s53, s52"""
    def setup(g):
        A, B = g.A, g.B
        if g.order == 'latin':
            t = f"s_and_b32 s{S_T}, s{S_POS}, {g.KS-1}\n" + g.latin(f"s{S_T}") + f"\ns_add_u32 s52, s52, s{S_OWN}\ns_and_b32 s52, s52, {g.KS-1}"
        elif g.order == 'rot':
            t = f"s_lshl_b32 s52, s{S_OWN}, 1\ns_add_u32 s52, s52, s{S_POS}\ns_and_b32 s52, s52, {g.KS-1}"
        else:
            u = uid()
            t = f"""s_lshl_b32 s52, s{S_OWN}, 1
            s_add_u32 s52, s52, s{S_POS}
            s_cmp_lt_u32 s{S_POS}, 2
            s_cbranch_scc1 L_ord{u}_d
            L_ord{u}:
            {g.latin(f"s{S_T}")}
            {g.hrot()}
            s_add_u32 s{S_T}, s{S_T}, 1
            s_lshr_b32 s53, s52, 1
            s_cmp_eq_u32 s53, s{S_OWN}
            s_cbranch_scc1 L_ord{u}
            L_ord{u}_d:"""
        t += f"""
        s_mul_i32 s{A.nx}, s52, {A.kstride}
        s_add_u32 s{A.nx}, s{A.nx}, s{A.sb}
        s_mul_i32 s{B.nx}, s52, {B.kstride}
        s_add_u32 s{B.nx}, s{B.nx}, s{B.sb}"""
        if g.NT > 1:
            t += f"\ns_lshr_b32 s53, s{S_POS}, {g.KS.bit_length()-1}"
            for o in (A, B):
                if o.tstride: t += f"\ns_mul_i32 s52, s53, s69\ns_add_u32 s{o.nx}, s{o.nx}, s52"
        return t
    def ensure(g, a, which='AB'):
        u = uid()
        t = f"s_lshr_b32 s52, s{S_POS}, 1\n"
        if 'B' in which: t += f"s_lshl_b32 s53, s52, 2\ns_lshl_b64 s[68:69], s[72:73], s53\n"
        else: t += "s_mov_b64 s[68:69], 0\n"
        if 'A' in which: t += f"s_add_u32 s52, s52, s{S_OWN}\ns_and_b32 s52, s52, 7\ns_bitset1_b64 s[68:69], s52\n"
        a(t + f"""s_andn2_b64 s[52:53], s[68:69], s[{S_MASK}:{S_MASK+1}]
        s_cbranch_scc0 L_ens{u}_ok
        s_mov_b32 s71, 0
        L_ens{u}:
        buffer_load_dword v25, v27, {WSR}, 0 offen sc1
        s_add_u32 s71, s71, 1
        s_waitcnt vmcnt(0)
        v_cmp_eq_u32 vcc, s{S_NONCE}, v25
        s_mov_b64 s[{S_MASK}:{S_MASK+1}], vcc
        s_andn2_b64 s[52:53], s[68:69], vcc
        s_cbranch_scc0 L_ens{u}_ok
        s_sleep 1
        s_cmp_lt_u32 s71, {SPIN_MAX}
        s_cbranch_scc1 L_ens{u}
        L_ens{u}_ok:""")
    def issue(g, a, ops=None):
        A, B = g.A, g.B
        ops = ops or (A, B)
        adv = f"""s_add_u32 s55, s55, {A.bytes}
        s_add_u32 s56, s56, {B.bytes}
        s_cmp_eq_u32 s55, s57
        s_cselect_b32 s55, s50, s55
        s_cselect_b32 s56, s51, s56
        s_cmp_lt_u32 s{S_POS}, {g.KS*g.NT - g.peel}
        s_cselect_b32 s64, 1, 0"""
        for k, o in enumerate(ops):
            for i in range(o.q):
                if i == 0:
                    a(f"s_mov_b32 m0, s{o.sm}")
                    if k == 0: a(f"s_mov_b32 s{A.so}, s{A.nx}\ns_mov_b32 s{B.so}, s{B.nx}")
                    else: a("s_nop 0")
                elif i % 4 == 0: a(f"s_add_u32 m0, m0, 4096\ns_add_u32 s{o.so}, s{o.so}, {o.gstride}")
                v = o.vd if o.kind in 'FL' else o.vd + i % 4
                a(f"buffer_load_dwordx4 v{v}, s[{o.srd}:{o.srd+3}], s{o.so} offen offset:{(i%4)*1024} {o.flags} lds")
                if k == 0 and i == 1:
                    a(f"s_add_u32 s{S_POS}, s{S_POS}, 1")
                    a(g.setup())
                if k == len(ops)-1 and i == (2 if k == 0 else 0): a(adv)
    def ld_loop(g, a):
        pw = g.A.q + g.B.q
        align(a)
        a.label(f"L_{g.name}_go")
        if g.epi == 'out': g.ensure(a)
        g.issue(a)
        a(f"""s_cmp_eq_u32 s64, 1
        s_waitcnt vmcnt({(g.LA-1)*pw})
        s_barrier
        s_cbranch_scc1 L_{g.name}_go""")
    def ld_tail(g, a, hook=None):
        pw = g.A.q + g.B.q
        for e in range(g.LA-2, -1, -1):
            a(f"s_waitcnt vmcnt({e*pw})\ns_barrier")
        if hook: hook(a)
        a("s_barrier")
    def ld_plain_start(g, a):
        for e in range(g.LA): g.issue(a)
        a(f"s_waitcnt vmcnt({(g.LA-1)*(g.A.q+g.B.q)})\ns_barrier")
    def ld_own_start(g, a, vpoll, lbl, ldsw, extra_bar=False):
        A, B, LA, NS = g.A, g.B, g.LA, g.NS
        pw = A.q + B.q
        st = (S_POS, S_T, 55, 56, A.nx, B.nx)
        LT = C.dbg.get('ltl') == lbl
        if LT: stamp(a, 1)
        for k, r in enumerate(st): a(f"s_mov_b32 s{94+k}, s{r}")
        a(f"s_waitcnt vmcnt({B.q})")
        if LT: stamp(a, 2)
        a("s_barrier")
        for p in range(2, NS): g.issue(a, (B,))
        for k, r in enumerate(st): a(f"s_mov_b32 s{r}, s{94+k}")
        if extra_bar: a("s_barrier")
        a(f"s_waitcnt vmcnt({(NS-2)*B.q})\ns_barrier")
        if LT: stamp(a, 3)
        if C.dbg.get('pdelay'): a(f"s_sleep {C.dbg['pdelay']}")
        if C.dbg.get('one'):
            a(f"""v_mov_b32 v30, {ldsw}
            s_cmp_eq_u32 s{S_LW}, 0
            s_cbranch_scc0 L_lw{lbl}""")
            poll(a, lbl, vpoll)
            a(f"""v_mov_b32 v25, s{S_NONCE}
            ds_write_b32 v30, v25
            s_branch L_own{lbl}
            L_lw{lbl}:
            s_mov_b32 s71, 0
            L_lw{lbl}_s:
            ds_read_b32 v25, v30
            s_add_u32 s71, s71, 1
            s_waitcnt lgkmcnt(0)
            v_cmp_ne_u32 vcc, s{S_NONCE}, v25
            s_cbranch_vccz L_own{lbl}
            s_cmp_lt_u32 s71, {SPIN_MAX*16}
            s_cbranch_scc1 L_lw{lbl}_s""")
        else:
            poll(a, lbl, vpoll)
        a.label(f"L_own{lbl}")
        if LT: stamp(a, 5)
        for p in range(2, NS): g.issue(a, (A,))
        g.issue(a)
        a(f"s_waitcnt vmcnt({(NS-3)*A.q + pw})")
        if LT: stamp(a, 6)
        a("s_barrier")

    def co_init(g, a):
        for o in (g.A, g.B):
            if o.kind == 'F':
                a(f"""s_mul_i32 s52, s{o.sg}, {o.WX*1024}
                s_add_u32 s52, s52, {o.off}
                v_lshl_add_u32 v{o.vrd}, v2, 4, s52""")
            elif o.kind == 'T':
                a(f"""v_lshrrev_b32 v5, 2, v3
                v_lshl_add_u32 v6, v4, 3, v5
                v_lshlrev_b32 v6, 8, v6
                v_and_b32 v7, 3, v2
                v_lshl_add_u32 v6, v7, 3, v6
                v_add_u32 v6, {o.off}, v6
                v_and_b32 v7, 1, v4
                v_lshl_or_b32 v5, v7, 2, v5
                s_mul_i32 s52, s{o.sg}, {o.WX}""")
                for b in range(o.WX):
                    a(f"""s_add_u32 s53, s52, {b}
                    v_xor_b32 v7, s53, v5
                    v_lshl_add_u32 v{o.vrd+b}, v7, 5, v6""")
            else:
                a(f"""s_mul_i32 s52, s{o.sg}, {o.WX*2048}
                s_add_u32 s52, s52, {o.off}
                v_lshl_add_u32 v5, v3, 7, s52
                v_lshrrev_b32 v6, 1, v3
                v_xor_b32 v6, v6, v4
                v_lshl_add_u32 v{o.vrd}, v6, 4, v5
                v_xor_b32 v6, 4, v6
                v_lshl_add_u32 v{o.vrd+1}, v6, 4, v5""")
            for rg in range(1, o.nrange):
                for i in range(o.nadr):
                    a(f"v_add_u32 v{o.vrd+rg*o.nadr+i}, {rg*o.spr*o.bytes}, v{o.vrd+i}")
        if g.NT > 1: g.zero(a)
    def zero(g, a):
        for i in range(4*g.A.WX*g.B.WX): a(f"v_mov_b32 v{g.acc+i}, 0")
    def reads(g, setn, slot, ksub):
        r = []
        for oi, o in enumerate((g.A, g.B)):
            f = g.fr[setn][oi]
            rg = slot // o.spr; so = (slot % o.spr)*o.bytes; vb = o.vrd + rg*o.nadr
            for x in range(o.WX):
                if o.kind == 'F': r.append(f"ds_read_b128 v[{f+4*x}:{f+4*x+3}], v{vb} offset:{so+(ksub*(o.BX//16)+x)*1024}")
                elif o.kind in 'RL': r.append(f"ds_read_b128 v[{f+4*x}:{f+4*x+3}], v{vb+ksub} offset:{so+x*2048}")
                else:
                    for t in range(2):
                        r.append(f"ds_read_b64_tr_b16 v[{f+4*x+2*t}:{f+4*x+2*t+1}], v{vb+x} offset:{so+ksub*8192+t*1024}")
        return r
    def mfmas(g, setn, zc=False):
        WA, WB = g.A.WX, g.B.WX
        m = []
        for x in range(WA):
            for yy in range(WB):
                y = yy if x % 2 == 0 else WB-1-yy
                c = g.acc + 4*(x*WB+y)
                fa, fb = g.fr[setn][0]+4*x, g.fr[setn][1]+4*y
                m.append(f"v_mfma_f32_16x16x32_bf16 v[{c}:{c+3}], v[{fa}:{fa+3}], v[{fb}:{fb+3}], " + ("0" if zc else f"v[{c}:{c+3}]"))
        return m
    def co_main(g, a, st_loop=None, st_end=None, after0=None):
        L, NS = g.name, g.NS
        def inter(ms, fill):
            out = []
            for i, m in enumerate(ms):
                out.append(m)
                if i < len(fill): out += fill[i]
            assert len(fill) <= len(ms)
            return out
        a("s_mov_b32 s57, 0\ns_mov_b32 s58, 0\ns_barrier")
        stamp(a, st_loop)
        for i in g.reads(0, g.slot0, 0): a(i)
        if g.NT == 1:
            sl = g.slot0
            a("s_waitcnt lgkmcnt(0)")
            for i in inter(g.mfmas(0, True), [[r] for r in g.reads(1, sl, 1)] + [["s_mov_b32 s57, 1", "s_cmp_eq_u32 s57, 1"]]): a(i)
            if after0: after0(a)
            a(f"s_branch L_{L}_m0")
        align(a)
        for k in range(NS):
            sl = (g.slot0 + k) % NS
            a.label(f"L_{L}_c{k}")
            a("s_waitcnt lgkmcnt(0)")
            fill = [[r] for r in g.reads(1, sl, 1)] + [["s_add_u32 s57, s57, 1", f"s_cmp_lt_u32 s57, {g.KS}"]]
            lf = C.dbg.get('lfine') == g.epi
            if lf: fill = [["s_memrealtime s[92:93]"]] + fill
            for i in inter(g.mfmas(0), fill): a(i)
            a.label(f"L_{L}_m{k}")
            a("s_waitcnt lgkmcnt(0)\ns_barrier")
            if lf: a("s_mov_b32 m0, s57\ns_nop 0\nv_writelane_b32 v15, s92, m0")
            for i in inter(g.mfmas(1), [[r] for r in g.reads(0, (sl+1) % NS, 0)]): a(i)
            if k < NS-1: a(f"s_cbranch_scc0 L_{L}_done")
            else: a(f"s_cbranch_scc1 L_{L}_c0")
        a.label(f"L_{L}_done")
        a("s_nop 7")
        stamp(a, st_end)
        if C.dbg.get('lfine') == g.epi:
            a(f"""v_writelane_b32 v15, s76, 0
            s_lshl_b32 s72, s2, 8
            s_add_u32 s72, s72, {0x8100000}
            v_lshlrev_b32 v5, 2, v2
            s_cmp_eq_u32 s{S_WAVE}, 0
            s_cbranch_scc0 L_lf_{L}
            buffer_store_dword v15, v5, {WSR}, s72 offen
            L_lf_{L}:""")
        g.epilogue(a)
        if g.NT > 1:
            g.post_tile(a)
            assert g.NT == 2
            a(f"""s_cmp_eq_u32 s58, 1
            s_cbranch_scc1 L_{L}_fin
            s_mov_b32 s58, 1
            s_mov_b32 s57, 0
            s_xor_b32 s{S_TA}, s{S_TA}, 4""")
            g.zero(a)
            a(f"s_branch L_{L}_c{g.KS % NS}")
            a.label(f"L_{L}_fin")
        a("s_waitcnt lgkmcnt(0)")
    def epilogue(g, a):
        A, B, WA, WB = g.A, g.B, g.A.WX, g.B.WX
        t = g.fr[1][0]
        def Cc(x, y, i): return g.acc + 4*(x*WB+y) + i
        def pack(r, p, y):
            return f"""v_cvt_pk_bf16_f32 v{r}, v{Cc(2*p,y,0)}, v{Cc(2*p,y,1)}
                v_cvt_pk_bf16_f32 v{r+1}, v{Cc(2*p,y,2)}, v{Cc(2*p,y,3)}
                v_cvt_pk_bf16_f32 v{r+2}, v{Cc(2*p+1,y,0)}, v{Cc(2*p+1,y,1)}
                v_cvt_pk_bf16_f32 v{r+3}, v{Cc(2*p+1,y,2)}, v{Cc(2*p+1,y,3)}"""
        n = 0
        if g.epi == 'w2':
            for p in range(WA//2):
                for y in range(WB):
                    r = t + 4*(n % 8); n += 1
                    a(pack(r, p, y))
                    a(f"buffer_store_dwordx4 v[{r}:{r+3}], v12, {WSR}, s{60+p} offen offset:{(y>>1)*2048+(y&1)*128} sc1")
                    if not C.dbg.get('dsend'): a(f"ds_write_b128 v9, v[{r}:{r+3}] offset:{p*8192+(y>>1)*2048+(y&1)*128}")
            n = 0
            for p in range(WA//2):
                for y in range(WB):
                    r = t + 4*(n % 8); n += 1
                    if not not C.dbg.get('dsend'): a(f"ds_write_b128 v9, v[{r}:{r+3}] offset:{p*8192+(y>>1)*2048+(y&1)*128}")
        elif g.epi == 'xr':
            a(f"""v_lshlrev_b32 v5, 4, v2
            s_lshl_b32 s52, s{S_TB}, 5
            s_lshl_b32 s53, s{S_TA}, 2
            s_add_u32 s52, s52, s53
            s_lshl_b32 s53, s{S_GA}, 1
            s_add_u32 s52, s52, s53
            s_lshl_b32 s52, s52, 1
            s_add_u32 s52, s52, s{S_GB}
            s_lshl_b32 s52, s52, 13
            s_add_u32 s52, s52, {XR_OFF}""")
            for p in range(WA//2):
                for y in range(WB):
                    r = t + 4*(n % 8); n += 1
                    if y == 4: a("s_add_u32 s53, s52, 4096")
                    a(pack(r, p, y))
                    a(f"buffer_store_dwordx4 v[{r}:{r+3}], v5, {WSR}, s{52 if y < 4 else 53} offen offset:{(y%4)*1024} sc1")
                a("s_add_u32 s52, s52, 16384")
        else:
            O = f"s[{SRD_M}:{SRD_M+3}]"
            of = C.dbg.get('outflag', 'nt')
            PIT = 144
            a("s_waitcnt lgkmcnt(0)")
            t0 = g.fr[0][0]
            def wr(y):
                for p in range(2):
                    r = t0 + 8*(y % 2) + 4*p
                    a(pack(r, p, y))
                    a(f"ds_write_b128 v12, v[{r}:{r+3}] offset:{y*16*PIT + p*64}")
            def rd(y):
                for h in range(2):
                    r = t0 + 16 + 8*(y % 8) + 4*h
                    a(f"ds_read_b128 v[{r}:{r+3}], v13 offset:{(y*16+h*8)*PIT}")
            def st(y):
                for h in range(2):
                    r = t0 + 16 + 8*(y % 8) + 4*h
                    a(f"buffer_store_dwordx4 v[{r}:{r+3}], v14, {O}, s60 offen {of}")
                    a(f"s_add_u32 s60, s60, {8*F*2}")
            wr(0); rd(0)
            for y in range(1, WB):
                wr(y); rd(y)
                a("s_waitcnt lgkmcnt(4)")
                st(y-1)
            a("s_waitcnt lgkmcnt(0)")
            st(WB-1)
    def epi_pre(g, a):
        if g.epi == 'w2':
            a(f"""v_bfe_u32 v5, v3, 2, 1
            v_lshlrev_b32 v12, 10, v5
            v_lshrrev_b32 v5, 3, v3
            v_lshl_add_u32 v12, v5, 6, v12
            v_and_b32 v5, 3, v3
            v_lshl_add_u32 v12, v5, 4, v12
            v_lshl_add_u32 v12, v4, 8, v12
            s_lshl_b32 s52, s{S_TB}, 5
            s_lshl_b32 s53, s{S_TA}, 2
            s_add_u32 s52, s52, s53
            s_lshl_b32 s53, s{S_GA}, 1
            s_add_u32 s52, s52, s53
            s_lshl_b32 s52, s52, 1
            s_add_u32 s52, s52, s{S_GB}
            s_lshl_b32 s60, s52, 12
            s_add_u32 s60, s60, {W2_OFF}
            s_add_u32 s61, s60, 8192
            s_xor_b32 s52, s{S_GA}, 1
            s_lshl_b32 s52, s52, 15
            s_lshl_b32 s53, s{S_GB}, 12
            s_add_u32 s52, s52, s53
            v_add_u32 v9, s52, v12""")
        elif g.epi == 'out':
            PIT = 144
            srd(a, SRD_M, P_OUT, S*F*2)
            a(f"""s_mul_i32 s52, s{S_WAVE}, {128*PIT}
            v_mul_u32_u24 v12, {PIT}, v3
            v_lshl_add_u32 v12, v4, 4, v12
            v_add_u32 v12, s52, v12
            v_lshrrev_b32 v6, 3, v2
            v_and_b32 v7, 7, v2
            v_mul_u32_u24 v13, {PIT}, v6
            v_lshl_add_u32 v13, v7, 4, v13
            v_add_u32 v13, s52, v13
            v_mul_u32_u24 v14, {F*2}, v6
            v_lshl_add_u32 v14, v7, 4, v14
            s_lshl_b32 s52, s{S_TB}, 1
            s_add_u32 s52, s52, s{S_GB}
            s_mul_i32 s60, s52, {128*F*2}
            s_lshl_b32 s53, s{S_TA}, 1
            s_add_u32 s53, s53, s{S_GA}
            s_lshl_b32 s53, s53, 7
            s_add_u32 s60, s60, s53""")

def p_phase(a):
    srd(a, SRD_M, P_QW, D*F*4)
    a(f"""v_mul_u32_u24 v32, {F*4}, v4
    v_lshl_add_u32 v32, v3, 4, v32
    s_lshl_b32 s52, s{S_TA}, 2
    s_add_u32 s52, s52, s{S_WAVE}
    s_mul_i32 s52, s52, {32*F*4}
    s_lshl_b32 s53, s{S_TB}, 9
    s_add_u32 s52, s52, s53""")
    Q = 64
    for i in range(8):
        for u in range(2):
            a(f"buffer_load_dwordx4 v[{Q+8*i+4*u}:{Q+8*i+4*u+3}], v32, s[{SRD_M}:{SRD_M+3}], s52 offen offset:{256*u} {C.dbg.get('qnt','nt')}")
        if i == 0:
            a(f"""s_mul_i32 s70, s{S_TA}, {F*2}
            s_lshl_b32 s53, s{S_TB}, 8
            s_add_u32 s70, s70, s53
            v_lshl_add_u32 v33, v3, 3, s70
            global_load_dwordx2 v[36:37], v33, s[{P_SC}:{P_SC+1}]
            global_load_dwordx2 v[38:39], v33, s[{P_SC}:{P_SC+1}] offset:128
            global_load_dwordx2 v[40:41], v33, s[{P_Z}:{P_Z+1}]
            global_load_dwordx2 v[42:43], v33, s[{P_Z}:{P_Z+1}] offset:128""")
        if i < 7: a(f"s_add_u32 s52, s52, {4*F*4}")
    a(f"""v_lshrrev_b32 v5, 1, v3
    v_lshrrev_b32 v6, 5, v2
    v_xor_b32 v5, v5, v6
    v_lshlrev_b32 v5, 4, v5
    v_lshl_add_u32 v5, v4, 7, v5
    v_and_b32 v6, 1, v2
    v_lshl_add_u32 v44, v6, 3, v5
    s_lshl_b32 s53, s{S_WAVE}, 12
    v_add_u32 v44, s53, v44
    v_xor_b32 v45, 32, v44
    v_xor_b32 v46, 64, v44
    v_xor_b32 v47, 0x60, v44
    s_mul_i32 s52, s{S_TA}, 28
    s_add_u32 s52, s52, s{S_TB}
    s_lshl_b32 s52, s52, 15
    s_add_u32 s52, s52, {WQ_OFF}
    s_add_u32 s53, s52, 16384
    s_waitcnt vmcnt(14)""")
    if C.dbg.get('pfine'): stamp(a, 1)
    for j in range(4):
        a(f"v_lshlrev_b32 v{48+2*j}, 16, v{36+j}")
        a(f"v_and_b32 v{49+2*j}, 0xffff0000, v{36+j}")
        a(f"v_lshlrev_b32 v{56+2*j}, 16, v{40+j}")
        a(f"v_and_b32 v{57+2*j}, 0xffff0000, v{40+j}")
    for i in range(8):
        if i: a(f"s_waitcnt vmcnt(14)")
        if i == 7 and C.dbg.get('pfine'): stamp(a, 2)
        if i == 7: a(f"v_mov_b32 v10, 0\nglobal_load_dword v11, v10, s[{P_DBG}:{P_DBG+1}] sc1")
        b = Q+8*i
        for j in range(8): a(f"v_cvt_f32_i32 v{b+j}, v{b+j}")
        for j in range(4): a(f"v_cvt_pk_bf16_f32 v{36+j}, v{b+2*j}, v{b+2*j+1}")
        for j in range(4):
            a(f"v_lshlrev_b32 v{b+2*j}, 16, v{36+j}")
            a(f"v_and_b32 v{b+2*j+1}, 0xffff0000, v{36+j}")
        for j in range(8): a(f"v_sub_f32 v{b+j}, v{b+j}, v{56+j}")
        for j in range(4): a(f"v_cvt_pk_bf16_f32 v{36+j}, v{b+2*j}, v{b+2*j+1}")
        for j in range(4):
            a(f"v_lshlrev_b32 v{b+2*j}, 16, v{36+j}")
            a(f"v_and_b32 v{b+2*j+1}, 0xffff0000, v{36+j}")
        for j in range(8): a(f"v_mul_f32 v{b+j}, v{b+j}, v{48+j}")
        o = 128+4*i
        for j in range(4): a(f"v_cvt_pk_bf16_f32 v{o+j}, v{b+2*j}, v{b+2*j+1}")
        for u in range(2):
            a(f"buffer_store_dwordx2 v[{o+2*u}:{o+2*u+1}], v{44+i%4}, {WSR}, s{52+u} offen offset:{i*512} sc1")
        for u in range(2):
            a(f"ds_write_b64 v{44+i%4}, v[{o+2*u}:{o+2*u+1}] offset:{u*16384+i*512}")
        if i == C.dbg.get('sbar', 7): a("s_barrier")

def get_nonce(a, lbl, va=24, vd=25):
    a(f"""v_mov_b32 v{va}, 0
    s_mov_b32 s71, 0
    L_nonce{lbl}:
    global_load_dword v{vd}, v{va}, s[{P_DBG}:{P_DBG+1}] sc1
    s_add_u32 s71, s71, 1
    s_waitcnt vmcnt(0)
    v_readfirstlane_b32 s{S_NONCE}, v{vd}
    s_cmp_gt_u32 s71, {SPIN_MAX}
    s_cbranch_scc1 L_nonce{lbl}_ok
    s_cmp_eq_u32 s{S_NONCE}, 0
    s_cbranch_scc1 L_nonce{lbl}
    L_nonce{lbl}_ok:""")

def put_flag(a, lbl, soff):
    a(f"""s_cmp_eq_u32 s{S_WAVE}, 0
    s_cbranch_scc0 L_pf{lbl}
    v_mov_b32 v10, 0
    v_mov_b32 v11, s{S_NONCE}
    s_mov_b64 exec, 1
    buffer_store_dword v11, v10, {WSR}, s{soff} offen sc1
    s_mov_b64 exec, -1
    L_pf{lbl}:""")

def poll(a, lbl, vaddr):
    a(f"""s_mov_b32 s71, 0
    L_poll{lbl}:
    buffer_load_dword v25, v{vaddr}, {WSR}, 0 offen sc1
    s_add_u32 s71, s71, 1
    s_waitcnt vmcnt(0)
    v_cmp_ne_u32 vcc, s{S_NONCE}, v25
    s_cbranch_vccz L_poll{lbl}_ok
    s_sleep {C.dbg.get('psleep', 1)}
    s_cmp_lt_u32 s71, {SPIN_MAX}
    s_cbranch_scc1 L_poll{lbl}
    L_poll{lbl}_ok:""")

MAP_83 = f"""s_mul_i32 s52, s{S_XCD}, 28
    s_add_u32 s52, s52, s{S_IDX}
    s_and_b32 s{S_TA}, s52, 7
    s_lshr_b32 s{S_TB}, s52, 3
    s_lshl_b32 s{S_RES}, s{S_TB}, 1
    s_add_u32 s{S_RES}, s{S_RES}, s{S_TA}
    s_and_b32 s{S_RES}, s{S_RES}, 7"""
MAP_47 = f"""s_and_b32 s{S_TA}, s{S_XCD}, 1
    s_lshl_b32 s{S_TA}, s{S_TA}, 2
    s_and_b32 s{S_RES}, s{S_IDX}, 3
    s_add_u32 s{S_TA}, s{S_TA}, s{S_RES}
    s_lshr_b32 s{S_TB}, s{S_XCD}, 1
    s_mul_i32 s{S_TB}, s{S_TB}, 7
    s_lshr_b32 s53, s{S_IDX}, 2
    s_add_u32 s{S_TB}, s{S_TB}, s53
    s_add_u32 s{S_RES}, s{S_RES}, s53
    s_and_b32 s{S_RES}, s{S_RES}, 3"""
MAP_A1 = f"""s_sub_u32 s{S_RES}, s{S_IDX}, 28
    s_add_u32 s{S_TA}, s{S_RES}, s{S_XCD}
    s_and_b32 s{S_TA}, s{S_TA}, 7
    s_cmp_lt_u32 s{S_TA}, 4
    s_cselect_b32 s69, 1, -1
    s_lshl_b32 s69, s69, 10
    s_mov_b32 s{S_TB}, s{S_XCD}
    s_lshl_b32 s{S_OWN}, s{S_XCD}, 1"""
SWAP = f"""s_mov_b32 s52, s{S_TA}
    s_mov_b32 s{S_TA}, s{S_TB}
    s_mov_b32 s{S_TB}, s52"""

def kernel(a, N):
    dbg = C.dbg
    m83 = dbg.get('m83')
    g2 = Gemm(N+"a2", Op('L', 128, 4, P_WS, WS_SIZE, 0, wsoff=WQ_OFF, flags="sc1"), Op('T', 128, 4, P_V, F*F*2, 65536, pitch=F*2), 56, 4, 1, 8 if m83 else 4, 'w2', 'own')
    g1 = Gemm(N+"a1", Op('T', 128, 4, P_U, D*D*2, 0, pitch=D*2, tstride=256), Op('R', 256, 8, P_X, S*D*2, 49152, pitch=D*2), 16, 3, 2, 4, 'xr', 'latin')
    gb = Gemm(N+"b", Op('F', 128, 4, P_WS, WS_SIZE, 0, wsoff=W2_OFF, flags="sc1"), Op('F', 256, 8, P_WS, WS_SIZE, 65536, wsoff=XR_OFF, flags="sc1"), 16, 3, 1, dbg.get('bn', 4), 'out', dbg.get('bord', 'rot'), slot0=2)
    g2.peel = 1
    lds = max(g.lds for g in (g2, g1, gb))
    nv = max(g.nv for g in (g2, g1, gb))
    a.kernel(N, 256, 512, lds, nv, sgpr=100)
    a(f"""s_cmp_ge_u32 s2, 256
    s_cbranch_scc1 L_{N}_end
    s_load_dwordx16 s[4:19], s[0:1], 0
    s_load_dwordx2 s[20:21], s[0:1], 64""")
    stamp(a, 0)
    a(f"""s_memrealtime s[22:23]
    v_lshrrev_b32 v1, 6, v0
    v_and_b32 v2, 63, v0
    s_and_b32 s{S_XCD}, s2, 7
    v_readfirstlane_b32 s{S_WAVE}, v1
    s_lshr_b32 s{S_IDX}, s2, 3
    v_and_b32 v3, 15, v2
    v_lshrrev_b32 v4, 4, v2
    s_and_b32 s{S_GA}, s{S_WAVE}, 1
    s_lshr_b32 s{S_GB}, s{S_WAVE}, 1
    s_sub_u32 s{S_LW}, s{S_WAVE}, 4
    s_waitcnt lgkmcnt(0)""")
    srd(a, SRD_WS, P_WS, WS_SIZE)
    a(f"""s_cmp_eq_u32 s2, 0
    s_cbranch_scc0 L_{N}_nn
    s_cmp_eq_u32 s{S_WAVE}, 0
    s_cbranch_scc0 L_{N}_nn
    s_or_b32 s22, s22, 1
    v_mov_b32 v24, 0
    v_mov_b32 v25, s22
    s_mov_b64 exec, 1
    global_store_dword v24, v25, s[{P_DBG}:{P_DBG+1}] sc1
    s_mov_b64 exec, -1
    L_{N}_nn:
    s_cmp_lt_u32 s{S_IDX}, 28
    s_cbranch_scc1 L_{N}_A2""")
    if not dbg.get('nocpf0'):
        a(f"""s_getpc_b64 s[22:23]
        L_{N}_pc0:
        v_lshlrev_b32 v5, 7, v0
        v_min_u32 v5, L_{N}_end-L_{N}_pc0, v5
        v_and_b32 v5, -4, v5
        s_cmp_lt_u32 s{S_WAVE}, 4
        s_cbranch_scc0 L_{N}_A1
        global_load_dword v14, v5, s[22:23]""")
    a(f"""s_branch L_{N}_A1
    L_{N}_A2:""")
    a(MAP_83 if m83 else MAP_47)
    a(f"""s_cmp_lt_u32 s{S_WAVE}, 4
    s_cbranch_scc0 L_{N}_A2l""")
    p_phase(a)
    a(f"s_branch L_{N}_A2c")
    a.label(f"L_{N}_A2l")
    a(f"""s_lshr_b32 s74, s{S_TA}, 2
    s_mul_i32 s74, s74, {dbg.get('hr', 28)}
    s_mov_b32 s{S_OWN}, s{S_TB}
    s_setprio 3""")
    g2.ld_init(a)
    get_nonce(a, "a2")
    FS = dbg.get('fs', 2)
    a(f"""s_lshl_b32 s52, s{S_TA}, {FS+5}
    s_add_u32 s52, s52, {PF}
    v_min_u32 v26, 27, v2
    v_lshl_add_u32 v26, v26, {FS}, s52
    s_barrier""")
    for e in range(2): g2.issue(a, (g2.B,))
    a("s_barrier")
    g2.ld_own_start(a, 26, "p", 140000)
    a(f"""s_lshl_b32 s52, s{S_TA}, 7
    s_add_u32 s52, s52, {XF-64}
    v_min_u32 v27, 47, v2
    v_lshl_add_u32 v27, v27, 2, s52
    s_lshl_b32 s52, s{S_TB}, 7
    s_add_u32 s52, s52, {AF}
    v_and_b32 v28, 7, v2
    v_lshl_add_u32 v28, v28, 2, s52
    v_cmp_gt_u32 vcc, 16, v2
    s_mov_b32 s72, 0xf0000
    s_mov_b32 s73, 0
    v_cndmask_b32 v27, v27, v28, vcc""")
    g2.ld_loop(a)
    pw2 = g2.A.q + g2.B.q
    assert g2.LA == 3
    a(f"""s_getpc_b64 s[22:23]
    L_{N}_pc:
    s_mov_b32 s52, L_{g2.name}_done-L_{N}_pc
    s_cmp_lt_u32 s{S_LW}, 2
    s_cselect_b32 s52, s52, 0
    s_and_b32 s53, s{S_LW}, 1
    s_lshl_b32 s53, s53, 12
    s_add_u32 s52, s52, s53
    v_lshl_add_u32 v5, v2, 6, s52
    global_load_dword v29, v5, s[22:23]
    buffer_load_dword v25, v27, {WSR}, 0 offen sc1""")
    g2.issue(a)
    a(f"""s_waitcnt vmcnt({2*pw2+2})
    s_barrier
    s_mov_b32 s{S_OWN}, s{S_TA}""")
    a(SWAP)
    gb.ld_init(a)
    A, B = gb.A, gb.B
    pwb = A.q + B.q
    LT = dbg.get('ltl') == 'a'
    a(f"""s_waitcnt vmcnt({pw2})
    s_barrier
    v_cmp_eq_u32 vcc, s{S_NONCE}, v25
    s_mov_b64 s[{S_MASK}:{S_MASK+1}], vcc""")
    gb.ensure(a, 'B')
    gb.issue(a, (B,))
    a(f"s_waitcnt vmcnt({B.q})\ns_barrier")
    gb.issue(a, (B,))
    a("s_barrier")
    if LT: stamp(a, 1)
    st = (S_POS, 55, 56, A.nx, B.nx)
    for k, r in enumerate(st): a(f"s_mov_b32 s{94+k}, s{r}")
    gb.ensure(a, 'B')
    a(f"s_waitcnt vmcnt({B.q})\ns_barrier")
    if LT: stamp(a, 2)
    gb.issue(a, (B,))
    a(f"s_barrier\ns_waitcnt vmcnt({B.q})\ns_barrier")
    if LT: stamp(a, 3)
    a(f"buffer_load_dword v25, v27, {WSR}, 0 offen sc1")
    gb.issue(a, (B,))
    for k, r in enumerate(st): a(f"s_mov_b32 s{r}, s{94+k}")
    a(f"""s_waitcnt vmcnt({B.q})
    v_cmp_eq_u32 vcc, s{S_NONCE}, v25
    s_mov_b64 s[{S_MASK}:{S_MASK+1}], vcc""")
    if LT: stamp(a, 4)
    gb.ensure(a, 'A')
    if LT: stamp(a, 5)
    gb.issue(a, (A,))
    gb.issue(a, (A,))
    a(f"s_waitcnt vmcnt({A.q})")
    if LT: stamp(a, 6)
    a("s_barrier")
    gb.ld_loop(a)
    gb.ld_tail(a)
    stamp_store(a, N+"l", 8, 256)
    a("s_endpgm")
    a.label(f"L_{N}_A2c")
    g2.epi_pre(a)
    a(f"""s_lshl_b32 s70, s{S_TA}, {FS+5}
    s_lshl_b32 s53, s{S_TB}, {FS}
    s_add_u32 s70, s70, s53
    s_add_u32 s70, s70, {PF}
    s_waitcnt vmcnt(0) lgkmcnt(0)
    v_readfirstlane_b32 s{S_NONCE}, v11
    s_cmp_lg_u32 s{S_NONCE}, 0
    s_cbranch_scc1 L_{N}_cn""")
    get_nonce(a, "c", 10, 11)
    a(f"L_{N}_cn:")
    if dbg.get('pfine'): stamp(a, 3)
    a("s_barrier")
    put_flag(a, "p", 70)
    a(f"""s_lshl_b32 s70, s{S_TB}, {max(7, FS+3)}
    s_lshl_b32 s53, s{S_TA}, {FS}
    s_add_u32 s70, s70, s53
    s_add_u32 s70, s70, {AF}""")
    stamp(a, 4 if dbg.get('pfine') else 1)
    g2.co_init(a)
    if dbg.get('pfine'): g2.co_main(a, 5, 6)
    else: g2.co_main(a, 2, 3)
    a(SWAP)
    gb.epi_pre(a)
    def after0(a):
        a("s_waitcnt vmcnt(0)\ns_barrier")
        put_flag(a, "a", 70)
        a("s_cmp_eq_u32 s57, 1")
        if not dbg.get('pfine'): stamp(a, 5)
    gb.co_init(a)
    if dbg.get('pfine'): gb.co_main(a, after0=after0)
    else: gb.co_main(a, 4, 6, after0=after0)
    stamp_store(a, N+"b", 8)
    a("s_endpgm")
    a.label(f"L_{N}_A1")
    a(MAP_A1)
    a(f"""s_cmp_lt_u32 s{S_WAVE}, 4
    s_cbranch_scc1 L_{N}_A1c
    s_setprio 3""")
    g1.ld_init(a)
    g1.ld_plain_start(a)
    g1.ld_loop(a)
    g1.ld_tail(a)
    a("s_endpgm")
    a.label(f"L_{N}_A1c")
    stamp(a, 1)
    a(f"""s_lshl_b32 s70, s{S_XCD}, 7
    s_lshl_b32 s52, s{S_RES}, 4
    s_add_u32 s70, s70, s52
    s_lshl_b32 s52, s{S_WAVE}, 2
    s_add_u32 s70, s70, s52
    s_add_u32 s70, s70, {XF}""")
    def post(a):
        get_nonce(a, "a1", 5, 6)
        a(f"""v_mov_b32 v6, s{S_NONCE}
        s_mov_b64 exec, 1
        buffer_store_dword v6, v5, {WSR}, s70 offen sc1
        s_mov_b64 exec, -1
        s_add_u32 s70, s70, 64""")
    g1.post_tile = post
    g1.co_init(a)
    g1.co_main(a, 2, 3)
    stamp_store(a, N+"a1", 5)
    a.label(f"L_{N}_end")
    a("s_endpgm")

def build(TL=False, **dbg):
    C.TL = TL; C.dbg = dbg; C.uid = 0
    a = Asm()
    kernel(a, "quip_kernel")
    t = a.text(HEADER)
    if not dbg.get('aslist'):
        K = "standalone__weight_only_int_quip__prompt_kernel"
        t = t.replace("; @launch kernel=quip_kernel grid", "; @launch grid")
        t = t.replace(".globl quip_kernel", ".globl " + K).replace(".type quip_kernel,", ".type " + K + ",").replace("\nquip_kernel:", "\n" + K + ":").replace(".amdhsa_kernel quip_kernel", ".amdhsa_kernel " + K)
    return t

if __name__ == "__main__":
    open("v8.s", "w").write(build())
    names = []
    for nm, kw in dict(base={}, mix=dict(dsmix=1), a=dict(ltl='a'), lfb=dict(lfine='out')).items():
        names.append(f"y_{nm}.s"); open(names[-1], "w").write(build(TL=True, **kw))
    print(" ".join(names))
```
